```python
import torch

def _softmax(x, axis=-1):
    return torch.softmax(x, dim=axis)
def _gelu(x):
    return torch.nn.functional.gelu(x, approximate="tanh")
def _silu(x):
    return torch.nn.functional.silu(x)
def _sigmoid(x):
    return torch.sigmoid(x)
def _layernorm(x, axis=-1, eps=1e-5):
    m = x.mean(dim=axis, keepdim=True)
    v = x.var(dim=axis, keepdim=True, unbiased=False)
    return (x - m) / torch.sqrt(v + eps)
def _scatter_add(tgt, idx, src, axis=0):
    return tgt.clone().index_add_(axis, idx, src)
def _segment_sum(src, seg, n):
    out = torch.zeros((n,) + src.shape[1:], dtype=src.dtype)
    return out.index_add_(0, seg, src)
def _pad(x, pw):
    flat = tuple(v for pair in reversed(pw) for v in pair)
    return torch.nn.functional.pad(x, flat)

kernel_name = 'parallel_sum__ssm_conv_s4__dense_activation_gelu__prompt'

def setup_inputs():

    _w = (lambda a: (lambda t: t.to(torch.bfloat16) if t.is_floating_point() else t)(torch.as_tensor(a)))
    def _A_setup():
        B, L, D, N = 1, 2048, 512, 128
        A_re = -(lambda _x: torch.exp(torch.as_tensor(_x)))((lambda *s: torch.randn(*s, dtype=torch.bfloat16) * 12.8)(D, N))
        A_im = torch.pi * (lambda *s: torch.randn(*s, dtype=torch.bfloat16) * 0.05)(D, N)
        B_re = (lambda *s: torch.randn(*s, dtype=torch.bfloat16) * 0.1)(D, N)
        B_im = (lambda *s: torch.randn(*s, dtype=torch.bfloat16) * 0.1)(D, N)
        C_re = (lambda *s: torch.randn(*s, dtype=torch.bfloat16) * 0.2)(D, N)
        C_im = (lambda *s: torch.randn(*s, dtype=torch.bfloat16) * 0.2)(D, N)
        log_dt = (lambda *s: torch.randn(*s, dtype=torch.bfloat16) * 0.05)(D) * 0.5 - 4.0
        Dskip = (lambda *s: torch.randn(*s, dtype=torch.bfloat16) * 0.05)(D)
        return {
            "u": _w((lambda *s: torch.randn(*s, dtype=torch.bfloat16) * 0.05)(B, L, D)),
            "A_re": _w(A_re),
            "A_im": _w(A_im),
            "B_re": _w(B_re),
            "B_im": _w(B_im),
            "C_re": _w(C_re),
            "C_im": _w(C_im),
            "log_dt": _w(log_dt),
            "Dskip": _w(Dskip),
        }
    _A_in = _A_setup()

    def _B_setup():
        B, S, D, F = 1, 2048, 512, 1792
        return {
            "x": _w((lambda *s: torch.randn(*s, dtype=torch.bfloat16) * 0.05)(B, S, D)),
            "w1": _w((lambda *s: torch.randn(*s, dtype=torch.bfloat16) * 0.8)(D, F) * (D ** -0.5)),
            "b1": _w((lambda *s: torch.randn(*s, dtype=torch.bfloat16) * 12.8)(F) * 0.01),
            "w2": _w((lambda *s: torch.randn(*s, dtype=torch.bfloat16) * 0.8)(F, D) * (F ** -0.5)),
            "b2": _w((lambda *s: torch.randn(*s, dtype=torch.bfloat16) * 12.8)(D) * 0.01),
        }
    _B_in = _B_setup()

    return {
        "A_u": _A_in["u"],
        "A_A_re": _A_in["A_re"],
        "A_A_im": _A_in["A_im"],
        "A_B_re": _A_in["B_re"],
        "A_B_im": _A_in["B_im"],
        "A_C_re": _A_in["C_re"],
        "A_C_im": _A_in["C_im"],
        "A_log_dt": _A_in["log_dt"],
        "A_Dskip": _A_in["Dskip"],
        "B_x": _B_in["x"],
        "B_w1": _B_in["w1"],
        "B_b1": _B_in["b1"],
        "B_w2": _B_in["w2"],
        "B_b2": _B_in["b2"],
    }

def reference(A_u, A_A_re, A_A_im, A_B_re, A_B_im, A_C_re, A_C_im, A_log_dt, A_Dskip, B_x, B_w1, B_b1, B_w2, B_b2):
    def _A_ref(u, A_re, A_im, B_re, B_im, C_re, C_im, log_dt, Dskip):
        Bsz, L, D = u.shape
        dt = torch.exp(log_dt)[:, None]
        A = A_re + 1j * A_im
        Bc = B_re + 1j * B_im
        Cc = C_re + 1j * C_im
        logdA = dt * A
        dB = dt * Bc
        l = (lambda x, dt: x.to(dt))(torch.arange(L), A_re.dtype)
        P = torch.exp(logdA[:, :, None] * l[None, None, :])
        K = torch.einsum("dn,dnl,dn->dl", Cc, P, dB).real
        L2 = 2 * L
        Kp = _pad(K, ((0, 0), (0, L)))
        up = (lambda x, *d: x.permute(*d))(u, 0, 2, 1)
        up = _pad(up, ((0, 0), (0, 0), (0, L)))
        Kf = (lambda x, axes=(-2,-1): torch.fft.rfft2(x.float(), dim=axes))(Kp[:, None, :], axes=(-2, -1))
        Uf = (lambda x, axes=(-2,-1): torch.fft.rfft2(x.float(), dim=axes))(up[:, :, None, :], axes=(-2, -1))
        Yf = Uf * Kf[None, :, :, :]
        y = (lambda x, s, axes=(-2,-1): torch.fft.irfft2(x, s=s, dim=axes).to(torch.bfloat16))(Yf, (1, L2), axes=(-2, -1))[:, :, 0, :L]
        y = (lambda x, *d: x.permute(*d))(y, 0, 2, 1) + u * Dskip[None, None, :]
        return y

    def _B_ref(x, w1, b1, w2, b2):
        h = torch.einsum("bsd,df->bsf", x, w1) + b1
        h = _gelu(h)
        return torch.einsum("bsf,fd->bsd", h, w2) + b2

    x = A_u
    xn = _layernorm(x, axis=-1)
    return x + _A_ref(xn, A_A_re, A_A_im, A_B_re, A_B_im, A_C_re, A_C_im, A_log_dt, A_Dskip) + _B_ref(xn, B_w1, B_b1, B_w2, B_b2)
```

```python
import re

TRANS = ("v_exp_f32", "v_log_f32", "v_rcp_f32", "v_rsq_f32", "v_sqrt_f32", "v_sin_f32", "v_cos_f32",
         "v_rcp_iflag_f32")


def _regs(tok):
    tok = tok.strip()
    tok = re.sub(r"^-", "", tok)
    m = re.match(r"^abs\((.*)\)$", tok) or re.match(r"^\|(.*)\|$", tok)
    if m:
        tok = m.group(1)
    m = re.match(r"^([vsa])(\d+)$", tok)
    if m:
        return {(m.group(1), int(m.group(2)))}
    m = re.match(r"^([vsa])\[(\d+):(\d+)\]$", tok)
    if m:
        return {(m.group(1), i) for i in range(int(m.group(2)), int(m.group(3)) + 1)}
    if tok in ("vcc", "vcc_lo", "vcc_hi"):
        return {("x", "vcc")}
    if tok in ("exec", "exec_lo", "exec_hi"):
        return {("x", "exec")}
    if tok == "m0":
        return {("x", "m0")}
    return set()


class Ins:
    def __init__(self, text):
        self.text = text
        t = text.split(";")[0].strip()
        self.label = t.endswith(":")
        self.op = ""
        self.w = set()
        self.r = set()
        self.kind = "other"
        self.states = 1
        self.passes = 0
        self.srcc = set()
        self.data = set()
        self.dpp = False
        if not t or self.label or t.startswith("."):
            self.states = 0
            self.kind = "none"
            return
        parts = t.split(None, 1)
        op = parts[0]
        self.op = op
        rest = parts[1] if len(parts) > 1 else ""
        ops = []
        depth = 0
        cur = ""
        for ch in rest:
            if ch in "[(":
                depth += 1
            if ch in "])":
                depth -= 1
            if ch == "," and depth == 0:
                ops.append(cur)
                cur = ""
            else:
                cur += ch
        if cur.strip():
            ops.append(cur)
        mods = ""
        if ops:
            lp = ops[-1].strip().split(None, 1)
            ops[-1] = lp[0]
            mods = lp[1] if len(lp) > 1 else ""
        ops = [o.strip() for o in ops]
        self.ops = ops
        self.mods = mods
        R = [_regs(o) for o in ops]
        if op == "s_nop":
            self.kind = "nop"
            self.states = int(ops[0], 0) + 1
        elif op.startswith("v_mfma"):
            self.kind = "mfma"
            self.passes = 8 if "32x32x16" in op else 4
            self.w = R[0]
            self.r = R[1] | R[2] | R[3]
            self.ab = R[1] | R[2]
            self.srcc = R[3]
        elif op.startswith("v_"):
            self.kind = "valu"
            self.dpp = any(k in mods for k in ("quad_perm", "row_shr", "row_shl", "row_ror", "row_mirror",
                                               "row_half_mirror", "row_bcast", "wave_", "row_newbcast"))
            if op.startswith("v_permlane"):
                self.w = R[0] | R[1]
                self.r = R[0] | R[1]
            elif op.startswith("v_cmpx"):
                self.w = R[0] | {("x", "exec")}
                self.r = set().union(*R[1:])
            elif op.startswith(("v_add_co", "v_sub_co", "v_addc_co", "v_subb_co")):
                self.w = R[0] | R[1]
                self.r = set().union(*R[2:])
            else:
                self.w = R[0]
                self.r = set().union(*R[1:]) if len(R) > 1 else set()
                if op.startswith(("v_fmac", "v_dot2c", "v_pk_fmac")) or self.dpp:
                    self.r |= R[0]
        elif op.startswith("ds_"):
            self.kind = "ds"
            if op.startswith(("ds_read", "ds_bpermute", "ds_permute", "ds_swizzle")):
                self.w = R[0]
                self.r = set().union(*R[1:])
                if "d16" in op:
                    self.r |= R[0]
            else:
                self.r = set().union(*R)
        elif op.startswith(("global_", "buffer_", "flat_")):
            self.kind = "vmem"
            lds = op.startswith("global_load_lds") or re.search(r"\blds\b", mods)
            self.lds = bool(lds)
            if lds:
                self.r = set().union(*R) | {("x", "m0")}
            elif "load" in op:
                self.w = R[0]
                self.r = set().union(*R[1:])
                if "d16" in op:
                    self.r |= R[0]
            else:
                self.r = set().union(*R)
                if op.endswith(("x3", "x4")):
                    self.data = R[1] if op.startswith("global_") else R[0]
        elif op.startswith("s_"):
            self.kind = "salu"
            if op.startswith(("s_cmp", "s_cbranch", "s_branch", "s_waitcnt", "s_barrier", "s_sleep", "s_endpgm",
                              "s_setprio", "s_bitcmp")):
                self.r = set().union(*R) if R else set()
            else:
                self.w = R[0] if R else set()
                self.r = set().union(*R[1:]) if len(R) > 1 else set()
                if "saveexec" in op:
                    self.w |= {("x", "exec")}


def need(prod, cons):
    n = 0
    pv = {x for x in prod.w if x[0] in "va"}
    ps = {x for x in prod.w if x[0] == "s" or x == ("x", "vcc")}
    if prod.kind == "valu":
        if cons.kind == "mfma" and pv & cons.r:
            n = max(n, 2)
        if cons.kind == "valu":
            if prod.op.startswith(TRANS) and not cons.op.startswith(TRANS) and pv & (cons.r | cons.w):
                n = max(n, 1)
            if cons.dpp and pv & cons.r:
                n = max(n, 2)
            if cons.op.startswith("v_permlane") and pv & cons.r:
                n = max(n, 2)
            if cons.op.startswith(("v_readfirstlane", "v_readlane")) and pv & cons.r:
                n = max(n, 1)
            if ps & cons.r:
                n = max(n, 4 if cons.op.startswith(("v_readlane", "v_writelane")) else 2)
            if ("x", "exec") in prod.w:
                n = max(n, 5)
            if ("op_sel" in prod.mods and not prod.op.startswith("v_pk")) and pv & (cons.r | cons.w):
                n = max(n, 1)
        if cons.kind == "vmem" and ps & cons.r:
            n = max(n, 5)
        if cons.kind == "mfma" and ("x", "exec") in prod.w:
            n = max(n, 4)
        if cons.kind == "salu" and ps & cons.r:
            n = max(n, 1)
        if prod.op.startswith("v_dot") and cons.kind in ("valu", "vmem", "ds", "mfma") and pv & (cons.r | cons.w):
            same_c = cons.op == prod.op and cons.kind == "valu" and not (pv & set().union(*[_regs(o) for o in cons.ops[1:3]]))
            if not same_c:
                n = max(n, 3)
    if prod.kind == "mfma":
        p = prod.passes
        big = {4: 8, 8: 12}[p]
        if cons.kind == "mfma":
            if prod.w & cons.ab:
                n = max(n, big)
            if prod.w & cons.srcc:
                if not (prod.w == cons.srcc and prod.passes == cons.passes):
                    n = max(n, {4: 6, 8: 10}[p])
            elif prod.w & cons.w:
                n = max(n, big)
        elif cons.kind in ("valu", "vmem", "ds"):
            if prod.w & (cons.r | cons.w):
                n = max(n, big)
            if cons.kind == "valu" and prod.srcc & cons.w:
                n = max(n, {4: 3, 8: 7}[p])
    if prod.kind == "vmem" and prod.data:
        if prod.data & cons.w:
            n = max(n, 2 if cons.kind == "valu" else 1)
    if prod.kind == "salu" and ("x", "m0") in prod.w:
        if cons.kind == "vmem" and getattr(cons, "lds", False):
            n = max(n, 1)
        if cons.kind == "ds" and "addtid" in cons.op:
            n = max(n, 1)
    if prod.kind == "salu" and ("x", "exec") in prod.w and cons.kind == "valu" and cons.dpp:
        n = max(n, 1)
    return n


def pad_hazards(lines):
    out = []
    hist = []
    for ln in lines:
        ins = Ins(ln)
        if ins.kind == "none":
            out.append(ln)
            continue
        dist = 0
        req = 0
        for p in reversed(hist):
            if dist >= 20:
                break
            n = need(p, ins)
            if n > dist:
                req = max(req, n - dist)
            dist += p.states
        while req > 0:
            k = min(req, 16)
            nop = f"  s_nop {k - 1}"
            out.append(nop)
            hist.append(Ins(nop))
            req -= k
        out.append(ln)
        hist.append(ins)
        if len(hist) > 40:
            hist = hist[-40:]
    return out


class Prog:
    def __init__(self):
        self.lines = []
        self.vm = []
        self.lg = []
        self.nlabel = 0

    def e(self, s):
        for ln in s.split("\n"):
            ln = ln.strip()
            if ln:
                self.lines.append(ln if ln.endswith(":") else "  " + ln)

    def c(self, s):
        self.lines.append("  ; " + s)

    def label(self, base="L"):
        self.nlabel += 1
        return f"{base}_{self.nlabel}"

    def vmem(self, s, tag=None):
        self.e(s)
        self.vm.append(tag)

    def ds(self, s, tag=None):
        self.e(s)
        self.lg.append(tag)

    def _n_after(self, lst, tags):
        if isinstance(tags, str):
            tags = [tags]
        last = -1
        for i, t in enumerate(lst):
            if t in tags:
                last = i
        return last

    def wait_vm(self, tags):
        last = self._n_after(self.vm, tags)
        if last < 0:
            return
        n = len(self.vm) - 1 - last
        assert n <= 63, n
        self.e(f"s_waitcnt vmcnt({n})")
        self.vm = self.vm[last + 1:]

    def wait_lg(self, tags):
        last = self._n_after(self.lg, tags)
        if last < 0:
            return
        n = len(self.lg) - 1 - last
        if n > 15:
            n = 15
            last = len(self.lg) - 1 - 15
        self.e(f"s_waitcnt lgkmcnt({n})")
        self.lg = self.lg[last + 1:]

    def wait_vm0(self):
        self.e("s_waitcnt vmcnt(0)")
        self.vm = []

    def wait_lg0(self):
        self.e("s_waitcnt lgkmcnt(0)")
        self.lg = []

    def fence(self):
        self.e("s_nop 15")
```

```python
import sys, struct, math
from asmlib import Prog, pad_hazards

DIAG = "--diag" in sys.argv
OUT = [a for a in sys.argv[1:] if not a.startswith("--")]
OUT = OUT[0] if OUT else "parallel_sum__ssm_conv_s4__dense_activation_gelu__prompt.s"
KNAME = "parallel_sum__ssm_conv_s4__dense_activation_gelu__prompt_kernel"


def fbits(x):
    return "0x%08x" % struct.unpack("<I", struct.pack("<f", x))[0]


WS_H = 0x000000
WS_W2 = 0x800000
WS_XNT = 0xA00000
WS_AT = 0xC00000
WS_ST = 0xE00000
WS_CS = 0xE04000
WS_FL = 0xE10000
FL_ST = WS_FL + 0
FL_CS = WS_FL + 512
FL_XT = WS_FL + 1024
FL_W = WS_FL + 2048
FL_H = WS_FL + 8192
FL_Y = WS_FL + 12288
WS_DBG = 0xF00000
L_U = 98304
L_EX = 116736
L_W2S = 131072
L_TAB = 138240
L_S1 = 143936
L_STAT = 161344
L_MISC = 163392
LDS_BYTES = 163840
TABSZ = 2832
CODE_LO = 0x3F7F
CODE_DUMMY = 0x4501
CODE_ZERO = 0x4502
SPIN_MAX = 200000

S_WAVE, S_XCD, S_SLOT, S_RB, S_FB, S_RB2, S_CT, S_TAG = 3, 4, 5, 6, 7, 8, 9, 10
P_X, P_ARE, P_AIM, P_BRE, P_BIM, P_CRE, P_CIM, P_LDT = [f"s[{16+2*i}:{17+2*i}]" for i in range(8)]
P_DSK, P_BX, P_W1, P_B1, P_W2, P_B2, P_OUT, P_DBG = [f"s[{32+2*i}:{33+2*i}]" for i in range(8)]
P_WS = "s[48:49]"
R_X, R_W1, R_W2, R_WS = "s[52:55]", "s[56:59]", "s[60:63]", "s[64:67]"

P = Prog()
e = P.e
nstamp = [0]


def stamp_reset():
    nstamp[0] = 0


def stamp():
    if not DIAG:
        return
    i = nstamp[0]
    nstamp[0] += 1
    assert i < 24
    e("s_waitcnt lgkmcnt(0)")
    e("s_memtime s[70:71]")
    e("s_waitcnt lgkmcnt(0)")
    e(f"s_mov_b32 s{72+i}, s70")
    P.lg = []


def stamp_dump():
    if not DIAG:
        return
    e("s_waitcnt vmcnt(0) lgkmcnt(0)")
    e(f"s_lshl_b32 s11, s2, 3\ns_add_u32 s11, s11, s{S_WAVE}\ns_lshl_b32 s11, s11, 7")
    e(f"s_add_u32 s11, s11, {WS_DBG}")
    e("v_mov_b32 v1, s11")
    for i in range(24):
        e(f"v_mov_b32 v2, s{72+i}")
        e(f"global_store_dword v1, v2, {P_WS} offset:{4*i}")
    e("s_memrealtime s[70:71]\ns_waitcnt lgkmcnt(0)\nv_mov_b32 v2, s70")
    e(f"global_store_dword v1, v2, {P_WS} offset:96")
    e("v_mov_b32 v2, s96")
    e(f"global_store_dword v1, v2, {P_WS} offset:100")


def srd(name, ptr_lo, nbytes):
    b = int(name[2:].split(":")[0])
    e(f"s_mov_b32 s{b}, s{ptr_lo}")
    e(f"s_and_b32 s{b+1}, s{ptr_lo+1}, 0xffff")
    e(f"s_mov_b32 s{b+2}, {nbytes}")
    e(f"s_mov_b32 s{b+3}, 0x00020000")


def build_srds():
    srd(R_X, 16, 2048 * 512 * 2)
    srd(R_W1, 36, 512 * 1792 * 2)
    srd(R_W2, 40, 1792 * 512 * 2)
    srd(R_WS, 48, 0x10000000)


def poll(vaddrs, vtmp, base=P_WS):
    L = P.label("poll")
    D = P.label("polld")
    e(f"s_mov_b32 s12, {SPIN_MAX}")
    e(f"{L}:")
    for k, va in enumerate(vaddrs):
        e(f"global_load_dword v{vtmp+k}, v{va}, {base} sc1")
    e("s_waitcnt vmcnt(0)")
    e(f"v_cmp_ne_u32 vcc, s{S_TAG}, v{vtmp}")
    for k in range(1, len(vaddrs)):
        e(f"v_cmp_ne_u32 s[14:15], s{S_TAG}, v{vtmp+k}")
        e("s_or_b64 vcc, vcc, s[14:15]")
    e("s_cmp_eq_u64 vcc, 0")
    e(f"s_cbranch_scc1 {D}")
    e("s_sub_u32 s12, s12, 1")
    e(f"s_cbranch_scc1 {D}")
    e("s_sleep 4")
    e(f"s_branch {L}")
    e(f"{D}:")
    P.vm = []


def get_nonce_slow(vtmp, vzero):
    L = P.label("nonce")
    D = P.label("nonced")
    e(f"s_mov_b32 s12, {SPIN_MAX}")
    e(f"{L}:")
    e(f"s_cmp_lg_u32 s{S_TAG}, 0")
    e(f"s_cbranch_scc1 {D}")
    e("s_sub_u32 s12, s12, 1")
    e(f"s_cbranch_scc1 {D}")
    e("s_sleep 2")
    e(f"global_load_dword v{vtmp}, v{vzero}, {P_DBG} sc1")
    e("s_waitcnt vmcnt(0)")
    e(f"v_readfirstlane_b32 s{S_TAG}, v{vtmp}")
    e("s_nop 4")
    e(f"s_branch {L}")
    e(f"{D}:")


def flag_store(s_off, vtmp):
    e(f"v_mov_b32 v{vtmp}, s{s_off}")
    e(f"v_mov_b32 v{vtmp+1}, s{S_TAG}")
    e("s_mov_b64 exec, 1")
    P.vmem(f"global_store_dword v{vtmp}, v{vtmp+1}, {P_WS} sc1", "flag")
    e("s_mov_b64 exec, -1")


e(f"{KNAME}:")
e("s_load_dwordx16 s[16:31], s[0:1], 0")
e("s_load_dwordx16 s[32:47], s[0:1], 64")
e("s_load_dwordx2 s[48:49], s[0:1], 128")
if DIAG:
    e("s_memtime s[70:71]")
    e("s_memrealtime s[96:97]")
e("s_cmp_ge_u32 s2, 256")
e("s_cbranch_scc1 L_END")
e("v_lshrrev_b32 v1, 6, v0")
e("v_and_b32 v0, 63, v0")
e(f"v_readfirstlane_b32 s{S_WAVE}, v1")
e(f"s_and_b32 s{S_XCD}, s2, 7")
e(f"s_lshr_b32 s{S_SLOT}, s2, 3")
e(f"s_lshr_b32 s11, s{S_SLOT}, 3")
e(f"s_lshl_b32 s{S_RB2}, s{S_XCD}, 2")
e(f"s_add_u32 s{S_RB2}, s{S_RB2}, s11")
e(f"s_and_b32 s{S_CT}, s{S_SLOT}, 7")
e(f"s_mov_b32 s{S_TAG}, 0")
if DIAG:
    for i in range(24):
        e(f"s_mov_b32 s{72+i}, 0")
e(f"s_cmp_ge_u32 s{S_SLOT}, 28")
e("s_cbranch_scc1 L_X")

e(f"s_mul_i32 s11, s{S_SLOT}, 37\ns_lshr_b32 s11, s11, 8")
e(f"s_mul_i32 s12, s11, 7\ns_sub_u32 s12, s{S_SLOT}, s12")
e(f"s_lshr_b32 s{S_RB}, s{S_XCD}, 1\ns_lshl_b32 s{S_RB}, s{S_RB}, 2\ns_add_u32 s{S_RB}, s{S_RB}, s11")
e(f"s_and_b32 s{S_FB}, s{S_XCD}, 1\ns_mul_i32 s{S_FB}, s{S_FB}, 7\ns_add_u32 s{S_FB}, s{S_FB}, s12")
e("""v_lshrrev_b32 v4, 3, v0
v_lshrrev_b32 v5, 4, v0
v_and_b32 v6, 7, v0
v_xor_b32 v6, v6, v5
v_lshlrev_b32 v6, 4, v6
v_lshl_add_u32 v1, v4, 10, v6
v_xor_b32 v2, 64, v1
v_and_b32 v6, 15, v0
v_lshlrev_b32 v7, 2, v5
v_xor_b32 v6, v6, v7
v_lshlrev_b32 v6, 4, v6
v_mul_u32_u24 v3, 3584, v5
v_add_u32 v3, v3, v6""")
e(f"s_lshl_b32 s98, s{S_RB}, 17")
e(f"s_lshl_b32 s99, s{S_FB}, 8")
e(f"s_lshl_b32 s11, s{S_WAVE}, 14\ns_add_u32 s13, s98, s11")
e(f"s_mul_i32 s11, s{S_WAVE}, 28672\ns_add_u32 s14, s99, s11")
e(f"s_lshl_b32 s15, s{S_WAVE}, 11")
e(f"s_cmp_ge_u32 s{S_WAVE}, 4")
e("s_cbranch_scc1 L_GA")


def prologue_dma():
    for kc in range(4):
        for pc in range(2):
            e(f"s_add_u32 m0, s15, {kc*32768 + pc*1024}")
            e(f"s_add_u32 s11, s13, {kc*128 + pc*8192}")
            P.vmem(f"buffer_load_dwordx4 v{1+pc}, {R_X}, s11 offen lds", f"C{kc}")
        for pc in range(2):
            e(f"s_add_u32 m0, s15, {kc*32768 + 16384 + pc*1024}")
            e(f"s_add_u32 s11, s14, {kc*229376 + pc*14336}")
            P.vmem(f"buffer_load_dwordx4 v3, {R_W1}, s11 offen lds", f"C{kc}")


P.vm, P.lg = [], []
stamp_reset()
e("s_waitcnt lgkmcnt(0)")
if DIAG:
    e("s_mov_b32 s72, s70")
    nstamp[0] = 1
build_srds()
prologue_dma()
stamp()
e(f"s_lshr_b32 s68, s{S_WAVE}, 1")
e(f"s_and_b32 s69, s{S_WAVE}, 1")
VXA, VXB, VWA, VWB = 48, 52, 56, 58
e("v_and_b32 v4, 31, v0")
e("s_lshl_b32 s11, s69, 6")
e("v_add_u32 v4, s11, v4")
e("v_lshrrev_b32 v5, 5, v0")
e("v_bfe_u32 v6, v0, 1, 3")
e("v_xor_b32 v6, v6, v5")
e("v_lshlrev_b32 v6, 4, v6")
e(f"v_lshl_add_u32 v{VXA}, v4, 7, v6")
for t in range(1, 4):
    e(f"v_xor_b32 v{VXA+t}, {t << 5}, v{VXA}")
for t in range(4):
    e(f"v_add_u32 v{VXB+t}, 0x10000, v{VXA+t}")
e("v_bfe_u32 v4, v0, 2, 2")
e("v_lshl_add_u32 v6, v5, 3, v4")
e("v_bfe_u32 v7, v0, 4, 1")
e("v_lshlrev_b32 v7, 1, v7")
e("v_bfe_u32 v8, v0, 1, 1")
e("v_add_u32 v7, v7, v8")
e("s_lshl_b32 s11, s68, 3")
e("v_add_u32 v7, s11, v7")
e("v_lshlrev_b32 v4, 2, v4")
e("v_xor_b32 v7, v7, v4")
e("v_lshlrev_b32 v7, 4, v7")
e("v_lshl_add_u32 v7, v6, 8, v7")
e("v_and_b32 v8, 1, v0")
e("v_lshl_add_u32 v7, v8, 3, v7")
e(f"v_add_u32 v{VWA}, 16384, v7")
e(f"v_xor_b32 v{VWA+1}, 64, v{VWA}")
e(f"v_add_u32 v{VWB}, 0x10000, v{VWA}")
e(f"v_add_u32 v{VWB+1}, 0x10000, v{VWA+1}")
ACC = 192


def acc(ft, lt):
    b = ACC + 32 * ft + 16 * lt
    return b


def g1_reads(n):
    c, t = divmod(n, 4)
    st = c % 4
    hi = st >= 2
    so = (st & 1) * 32768
    b = 16 + 16 * (n & 1)
    vx = (VXB if hi else VXA) + t
    vw = VWB if hi else VWA
    tag = f"R{n}"
    for ft in range(2):
        for h in range(2):
            r = b + 8 + 4 * ft + 2 * h
            P.ds(f"ds_read_b64_tr_b16 v[{r}:{r+1}], v{vw+ft} offset:{so + t*4096 + h*1024}", tag)
        P.ds(f"ds_read_b128 v[{b+4*ft}:{b+4*ft+3}], v{vx} offset:{so + ft*4096}", tag)


def g1_mfma(n):
    b = 16 + 16 * (n & 1)
    for ft, lt in ((0, 0), (0, 1), (1, 0), (1, 1)):
        a = acc(ft, lt)
        c = "0" if n == 0 else f"v[{a}:{a+15}]"
        e(f"v_mfma_f32_32x32x16_bf16 v[{a}:{a+15}], v[{b+8+4*ft}:{b+8+4*ft+3}], v[{b+4*lt}:{b+4*lt+3}], {c}")


P.wait_vm("C0")
e("s_barrier")
stamp()
g1_reads(0)
for n in range(32):
    if n + 1 < 32:
        if (n + 1) % 4 == 0:
            c1 = (n + 1) // 4
            P.wait_lg(f"R{n}")
            if c1 <= 3:
                P.wait_vm(f"C{c1}")
            e("s_barrier")
            if c1 in (4,):
                stamp()
        g1_reads(n + 1)
        P.wait_lg(f"R{n}")
    else:
        P.wait_lg(f"R{n}")
        e("s_barrier")
        stamp()
    g1_mfma(n)

W2R = 64
V_LANE16 = 1
V_W2OFF = 2
V_HOFF = 3
e(f"v_lshlrev_b32 v{V_LANE16}, 4, v0")
ST_R = 4
e("v_and_b32 v8, 31, v0")
e("s_lshl_b32 s11, s69, 6")
e("v_add_u32 v8, s11, v8")
e("v_lshlrev_b32 v8, 3, v8")
e(f"v_add_u32 v8, {L_STAT}, v8")
P.ds(f"ds_read_b64 v[{ST_R}:{ST_R+1}], v8", "st")
P.ds(f"ds_read_b64 v[{ST_R+2}:{ST_R+3}], v8 offset:256", "st")
e("v_lshrrev_b32 v9, 5, v0")
e("v_lshlrev_b32 v9, 4, v9")
e("s_lshl_b32 s11, s68, 8")
e(f"s_add_u32 s11, s11, {L_STAT+1024}")
e("v_add_u32 v9, s11, v9")
e(f"v_mov_b32 v10, {L_MISC}")
P.ds("ds_read_b32 v10, v10", "tag")
CS, B1 = 16, 32


def cs_reads(ft):
    for qd in range(4):
        P.ds(f"ds_read_b128 v[{CS+4*qd}:{CS+4*qd+3}], v9 offset:{ft*128 + qd*32}", f"cs{ft}")
        P.ds(f"ds_read_b128 v[{B1+4*qd}:{B1+4*qd+3}], v9 offset:{512 + ft*128 + qd*32}", f"cs{ft}")


cs_reads(0)


def g2_setup_offsets():
    e(f"s_mul_i32 s11, s{S_CT}, {2*112*1024}")
    e(f"s_mul_i32 s12, s{S_WAVE}, {28*1024}")
    e("s_add_u32 s11, s11, s12")
    e(f"s_add_u32 s50, s11, {WS_W2}")
    e(f"s_mul_i32 s11, s{S_RB2}, {2*112*1024}")
    e("s_add_u32 s51, s11, s12")


g2_setup_offsets()


def w2_load(k, d):
    r = W2R + 8 * k + 4 * d
    e(f"s_add_u32 s11, s50, {d*112*1024 + k*1024}")
    P.vmem(f"buffer_load_dwordx4 v[{r}:{r+3}], v{V_LANE16}, {R_WS}, s11 offen sc1", "w2r")


def w2_dma(k, d):
    e(f"s_add_u32 m0, s13, {((k-16)*2+d)*1024}")
    e(f"s_add_u32 s11, s50, {d*112*1024 + k*1024}")
    P.vmem(f"buffer_load_dwordx4 v{V_LANE16}, {R_WS}, s11 offen sc1 lds", "w2l")


e(f"s_mul_i32 s13, s{S_WAVE}, 24576")
K1 = -2.0 * math.sqrt(2.0 / math.pi) * math.log2(math.e)
e(f"s_mov_b32 s14, {fbits(K1*0.044715)}\ns_mov_b32 s15, {fbits(K1*0.044715)}")
e(f"v_mov_b32 v12, {fbits(K1)}\nv_mov_b32 v13, {fbits(K1)}")
e("v_mov_b32 v14, 1.0\nv_mov_b32 v15, 1.0")
e(f"s_lshl_b32 s11, s{S_RB}, 2\ns_lshl_b32 s12, s69, 1\ns_add_u32 s11, s11, s12\ns_mul_i32 s11, s11, {112*1024}")
e(f"s_lshl_b32 s12, s{S_FB}, 13\ns_add_u32 s11, s11, s12\ns_lshl_b32 s12, s68, 12\ns_add_u32 s98, s11, s12")

early_w2 = [(k, d) for k in range(8) for d in range(2)]
T = 48
OUTP = 44


def gelu_group(ft, lt, half):
    a0 = acc(ft, lt) + 8 * half
    st = ST_R + 2 * lt
    tp = [T + 2 * i for i in range(4)]
    up = [T + 8 + 2 * i for i in range(4)]
    for i in range(4):
        r = 8 * half + 2 * i
        e(f"v_pk_fma_f32 v[{up[i]}:{up[i]+1}], v[{CS+r}:{CS+r+1}], v[{st}:{st+1}], v[{B1+r}:{B1+r+1}] op_sel:[0,1,0] op_sel_hi:[1,1,1] neg_lo:[0,1,0] neg_hi:[0,1,0]")
    for i in range(4):
        e(f"v_pk_fma_f32 v[{tp[i]}:{tp[i]+1}], v[{a0+2*i}:{a0+2*i+1}], v[{st}:{st+1}], v[{up[i]}:{up[i]+1}] op_sel:[0,0,0] op_sel_hi:[1,0,1]")
    for i in range(4):
        e(f"v_pk_mul_f32 v[{up[i]}:{up[i]+1}], v[{tp[i]}:{tp[i]+1}], v[{tp[i]}:{tp[i]+1}]")
    for i in range(4):
        e(f"v_pk_fma_f32 v[{up[i]}:{up[i]+1}], v[{up[i]}:{up[i]+1}], s[14:15], v[12:13]")
    for i in range(4):
        e(f"v_pk_mul_f32 v[{up[i]}:{up[i]+1}], v[{up[i]}:{up[i]+1}], v[{tp[i]}:{tp[i]+1}]")
    for i in range(4):
        e(f"v_exp_f32 v{up[i]}, v{up[i]}\nv_exp_f32 v{up[i]+1}, v{up[i]+1}")
    for i in range(4):
        e(f"v_pk_add_f32 v[{up[i]}:{up[i]+1}], v[{up[i]}:{up[i]+1}], v[14:15]")
    for i in range(4):
        e(f"v_rcp_f32 v{up[i]}, v{up[i]}\nv_rcp_f32 v{up[i]+1}, v{up[i]+1}")
    for i in range(4):
        e(f"v_pk_mul_f32 v[{tp[i]}:{tp[i]+1}], v[{tp[i]}:{tp[i]+1}], v[{up[i]}:{up[i]+1}]")
    for i in range(4):
        e(f"v_cvt_pk_bf16_f32 v{a0+i}, v{tp[i]}, v{tp[i]+1}")
    e(f"s_add_u32 s11, s98, {lt*112*1024 + (2*ft+half)*1024}")
    P.vmem(f"buffer_store_dwordx4 v[{a0}:{a0+3}], v{V_LANE16}, {R_WS}, s11 offen sc1", "hst")


P.wait_lg(["st", "tag", "cs0"])
e(f"v_readfirstlane_b32 s{S_TAG}, v10")
gi = 0
for ft in range(2):
    if ft == 1:
        cs_reads(1)
        P.wait_lg("cs1")
    for lt in range(2):
        for half in range(2):
            if gi < 4:
                for (k, d) in early_w2[4*gi:4*gi+4]:
                    w2_load(k, d)
            gelu_group(ft, lt, half)
            gi += 1
stamp()
e(f"s_lshl_b32 s11, s{S_RB}, 1\ns_add_u32 s11, s11, s69\ns_lshl_b32 s11, s11, 5")
e(f"s_lshl_b32 s12, s{S_FB}, 1\ns_add_u32 s11, s11, s12\ns_add_u32 s11, s11, s68\ns_lshl_b32 s11, s11, 2")
e(f"s_add_u32 s99, s11, {FL_H}")
P.wait_vm("hst")
flag_store(99, 10)
stamp()
for k in range(8, 16):
    for d in range(2):
        w2_load(k, d)
e("L_G2JOIN:")
for k in range(16, 28):
    for d in range(2):
        w2_dma(k, d)
e("v_min_u32 v4, 6, v0")
e(f"s_lshl_b32 s11, s{S_RB2}, 5\ns_mul_i32 s12, s{S_WAVE}, 7\ns_add_u32 s11, s11, s12\ns_lshl_b32 s11, s11, 2")
e(f"s_add_u32 s11, s11, {FL_H}")
e("v_lshlrev_b32 v4, 2, v4")
e("v_add_u32 v4, s11, v4")
nstamp[0] = 7
poll([4], 5)
stamp()
HR = 16
HD = 6


def h_load(k):
    s = k % HD
    for lt in range(2):
        r = HR + 8 * s + 4 * lt
        e(f"s_add_u32 s11, s51, {lt*112*1024 + k*1024}")
        P.vmem(f"buffer_load_dwordx4 v[{r}:{r+3}], v{V_LANE16}, {R_WS}, s11 offen sc1", f"h{k}")


e(f"v_add_u32 v4, s13, v{V_LANE16}")


def w2l_read(k):
    kk = k - 16
    for d in range(2):
        r = W2R + 8 * kk + 4 * d
        P.ds(f"ds_read_b128 v[{r}:{r+3}], v4 offset:{(kk*2+d)*1024}", f"wl{k}")


def q(dt2, lt2):
    return ACC + 16 * (2 * dt2 + lt2)


for k in range(HD):
    h_load(k)
for k in range(28):
    if 2 <= k < 14:
        w2l_read(k + 14)
    if k >= 16:
        P.wait_lg(f"wl{k}")
    P.wait_vm(f"h{k}")
    if k == 0:
        stamp()
    wr = W2R + 8 * (k if k < 16 else k - 16)
    hr = HR + 8 * (k % HD)
    for dt2, lt2 in ((0, 0), (0, 1), (1, 0), (1, 1)):
        a = q(dt2, lt2)
        c = "0" if k == 0 else f"v[{a}:{a+15}]"
        e(f"v_mfma_f32_32x32x16_bf16 v[{a}:{a+15}], v[{wr+4*dt2}:{wr+4*dt2+3}], v[{hr+4*lt2}:{hr+4*lt2+3}], {c}")
    if k + HD < 28:
        h_load(k + HD)
stamp()
P.wait_lg0()
e("s_nop 11")
for w in range(4):
    lab = f"L_RW{w}"
    e(f"s_cmp_eq_u32 s{S_WAVE}, {w}")
    e(f"s_cbranch_scc1 {lab}")
    a = ACC + 16 * w
    for j in range(4):
        e(f"ds_write_b128 v4, v[{a+4*j}:{a+4*j+3}] offset:{w*4096 + j*1024}")
    e(f"{lab}:")
for w in range(4):
    lab = f"L_RM{w}"
    e(f"s_cmp_lg_u32 s{S_WAVE}, {w}")
    e(f"s_cbranch_scc1 {lab}")
    a = ACC + 16 * w
    for j in range(16):
        e(f"v_mov_b32 v{16+j}, v{a+j}")
    e(f"{lab}:")
e(f"s_lshl_b32 s12, s{S_WAVE}, 12")
for i in range(1, 4):
    e(f"s_add_u32 s11, s{S_WAVE}, {i}\ns_and_b32 s11, s11, 3\ns_mul_i32 s11, s11, 24576\ns_add_u32 s11, s11, s12")
    e(f"v_add_u32 v{4+i}, s11, v{V_LANE16}")
e(f"s_add_u32 s11, s12, {L_EX}")
e(f"v_add_u32 v8, s11, v{V_LANE16}")
e(f"s_and_b32 s11, s{S_WAVE}, 1\ns_lshl_b32 s11, s11, 5\ns_lshl_b32 s12, s{S_RB2}, 6\ns_add_u32 s11, s11, s12\ns_lshl_b32 s11, s11, 10")
e(f"s_lshr_b32 s12, s{S_WAVE}, 1\ns_lshl_b32 s12, s12, 6\ns_add_u32 s11, s11, s12\ns_lshl_b32 s12, s{S_CT}, 7\ns_add_u32 s11, s11, s12")
e("v_and_b32 v9, 31, v0\nv_lshlrev_b32 v9, 10, v9\nv_lshrrev_b32 v10, 5, v0\nv_lshl_add_u32 v9, v10, 4, v9\nv_add_u32 v9, s11, v9")
e("s_waitcnt lgkmcnt(0)")
e("s_barrier")
stamp()
P.lg = []
for i in range(4):
    for j in range(4):
        r = 64 + 16 * i + 4 * j
        P.ds(f"ds_read_b128 v[{r}:{r+3}], v{5+i} offset:{j*1024}", f"p{i}")
for i in range(4):
    P.wait_lg(f"p{i}")
    for j in range(8):
        r = 64 + 16 * i + 2 * j
        e(f"v_pk_add_f32 v[{16+2*j}:{17+2*j}], v[{16+2*j}:{17+2*j}], v[{r}:{r+1}]")
for j in range(8):
    e(f"v_cvt_pk_bf16_f32 v{32+j}, v{16+2*j}, v{17+2*j}")
for pr in range(2):
    b = 32 + 4 * pr
    e(f"v_permlane32_swap_b32 v{b}, v{b+2}")
    e(f"v_permlane32_swap_b32 v{b+1}, v{b+3}")
for pr in range(2):
    b = 32 + 4 * pr
    e(f"global_store_dwordx4 v9, v[{b}:{b+3}], {P_OUT} offset:{pr*32}")
stamp()
stamp_dump()
e("s_endpgm")


def aux_phase1(is_g):
    P.vm, P.lg = [], []
    stamp_reset()
    e("s_waitcnt lgkmcnt(0)")
    if DIAG:
        e("s_mov_b32 s72, s70")
        nstamp[0] = 1
    build_srds()
    e(f"s_sub_u32 s68, s{S_WAVE}, 4")
    e("s_lshr_b32 s69, s68, 1")
    e("s_and_b32 s94, s68, 1")
    e("s_lshl_b32 s95, s2, 1\ns_add_u32 s95, s95, s69")
    if is_g:
        lab = P.label("nn")
        e(f"s_add_u32 s11, s2, s68\ns_cmp_lg_u32 s11, 0\ns_cbranch_scc1 {lab}")
        e("s_memrealtime s[70:71]\ns_waitcnt lgkmcnt(0)")
        e("s_mul_i32 s11, s70, 0x9E3779B1\ns_or_b32 s11, s11, 1")
        e("v_mov_b32 v17, 0\nv_mov_b32 v18, s11")
        e(f"global_store_dword v17, v18, {P_DBG} sc1")
        e(f"{lab}:")
    e("s_lshl_b32 s11, s95, 8\ns_lshl_b32 s12, s94, 7\ns_add_u32 s11, s11, s12")
    e("v_lshlrev_b32 v17, 1, v0\nv_add_u32 v17, s11, v17")
    for i, p in enumerate((P_ARE, P_AIM, P_BRE, P_BIM, P_CRE, P_CIM)):
        P.vmem(f"global_load_ushort v{4+i}, v17, {p}", "par")
    e("s_lshl_b32 s11, s95, 1\nv_mov_b32 v17, s11")
    P.vmem(f"global_load_ushort v10, v17, {P_LDT}", "par")
    e(f"s_and_b32 s11, s{S_SLOT}, 1\ns_lshl_b32 s12, s{S_XCD}, 1\ns_add_u32 s50, s11, s12")
    e(f"s_lshr_b32 s11, s{S_SLOT}, 1\ns_mul_i32 s51, s11, 7")
    e("v_lshrrev_b32 v17, 2, v0\nv_and_b32 v18, 3, v0\nv_lshlrev_b32 v18, 4, v18\nv_lshl_add_u32 v17, v17, 10, v18")
    for s in range(2):
        e(f"s_lshl_b32 s11, s68, 1\ns_add_u32 s11, s11, {s}\ns_min_u32 s{92+s}, s11, 6")
        e(f"s_lshl_b32 s11, s{92+s}, 10\ns_add_u32 m0, s11, {L_W2S}")
        e(f"s_add_u32 s11, s51, s{92+s}\ns_lshl_b32 s11, s11, 14\ns_lshl_b32 s12, s50, 6\ns_add_u32 s11, s11, s12")
        P.vmem(f"buffer_load_dwordx4 v17, {R_W2}, s11 offen lds", "w2d")
    if is_g:
        prologue_dma()
        e("s_lshl_b32 s11, s68, 15\ns_add_u32 s13, s98, s11")
        e("s_mul_i32 s11, s68, 57344\ns_add_u32 s14, s99, s11")
        e("s_lshl_b32 s15, s68, 12")
    stamp()

    def late_dma(kc):
        if not is_g:
            return
        st = kc % 4
        for pc in range(4):
            e(f"s_add_u32 m0, s15, {st*32768 + pc*1024}")
            e(f"s_add_u32 s11, s13, {kc*128 + pc*8192}")
            P.vmem(f"buffer_load_dwordx4 v{1+(pc&1)}, {R_X}, s11 offen lds", f"C{kc}")
        for pc in range(4):
            e(f"s_add_u32 m0, s15, {st*32768 + 16384 + pc*1024}")
            e(f"s_add_u32 s11, s14, {kc*229376 + pc*14336}")
            P.vmem(f"buffer_load_dwordx4 v3, {R_W1}, s11 offen lds", f"C{kc}")

    def bar(c):
        if is_g and c <= 7:
            P.wait_vm(f"C{c}")
        P.wait_lg0()
        e("s_barrier")

    ZR, ZI, WR, WI, T0, T1 = 11, 12, 13, 14, 15, 16
    E1, E2, E4, E6, CA, CB, E8, E256, E512 = 18, 20, 22, 24, 26, 28, 30, 32, 34
    PK = 36
    WB, RB = 40, 44
    RF, CF, KA = 48, 80, 112

    def cmul(d, a, b):
        e(f"v_mul_f32 v{T0}, v{a+1}, v{b+1}")
        e(f"v_mul_f32 v{T1}, v{a+1}, v{b}")
        e(f"v_fma_f32 v{d}, v{a}, v{b}, -v{T0}")
        e(f"v_fma_f32 v{d+1}, v{a}, v{b+1}, v{T1}")

    def direct(d, a):
        e(f"v_mul_f32 v{T0}, {fbits(a)}, v{ZR}")
        e(f"v_mul_f32 v{T1}, {fbits(a)}, v{ZI}")
        e(f"v_exp_f32 v{T0}, v{T0}")
        e(f"v_fract_f32 v{T1}, v{T1}")
        e(f"v_cos_f32 v{d}, v{T1}")
        e(f"v_sin_f32 v{d+1}, v{T1}")
        e(f"v_mul_f32 v{d}, v{T0}, v{d}")
        e(f"v_mul_f32 v{d+1}, v{T0}, v{d+1}")

    pend = []

    def put(row, reg):
        slot = PK + (row & 1) + 2 * ((row >> 1) & 1)
        if reg is None:
            e(f"v_mov_b32 v{slot}, 0x3f80")
        else:
            e(f"v_cvt_pk_bf16_f32 v{slot}, v{reg}, v{reg+1}")
        if row & 1:
            o = 136 * ((row >> 1) & 1)
            P.ds(f"ds_write2_b32 v{WB + (row >> 2)}, v{slot-1}, v{slot} offset0:{o} offset1:{o+68}", "kw")

    def frag_reads(dst, tag):
        for kk in range(4):
            P.ds(f"ds_read_b128 v[{dst+4*kk}:{dst+4*kk+3}], v{RB} offset:{kk*64}", tag)

    e(f"s_mul_i32 s11, s68, 4352\ns_add_u32 s11, s11, {L_S1}")
    e("v_lshlrev_b32 v17, 2, v0")
    e(f"v_add_u32 v{WB}, s11, v17")
    for i in range(1, 4):
        e(f"v_add_u32 v{WB+i}, {i*4*272}, v{WB}")
    e("v_and_b32 v17, 15, v0\nv_mul_u32_u24 v17, 272, v17\nv_lshrrev_b32 v18, 4, v0\nv_lshl_add_u32 v17, v18, 4, v17")
    e(f"v_add_u32 v{RB}, s11, v17")
    e(f"v_lshlrev_b32 v17, 2, v0\nv_add_u32 v17, {L_MISC}, v17\nv_mov_b32 v18, 0")
    P.ds("ds_write_b32 v17, v18", "z")
    e(f"v_mov_b32 v17, {L_TAB + 2*(CODE_ZERO-CODE_LO)}")
    P.ds("ds_write_b16 v17, v18", "z")
    P.ds(f"ds_write_b16 v17, v18 offset:{TABSZ}", "z")
    P.wait_vm("par")
    stamp()
    for i in range(7):
        e(f"v_lshlrev_b32 v{4+i}, 16, v{4+i}")
    e(f"v_mul_f32 v10, {fbits(math.log2(math.e))}, v10")
    e("v_exp_f32 v10, v10")
    e("v_cvt_pk_bf16_f32 v10, v10, v10")
    e("v_lshlrev_b32 v10, 16, v10")
    e(f"v_mul_f32 v{ZR}, v10, v4\nv_mul_f32 v{ZI}, v10, v5")
    e(f"v_mul_f32 v{ZR}, {fbits(math.log2(math.e))}, v{ZR}\nv_mul_f32 v{ZI}, {fbits(1/(2*math.pi))}, v{ZI}")
    e("v_mul_f32 v6, v10, v6\nv_mul_f32 v7, v10, v7")
    cmul(CA, 8, 6)
    e(f"v_mov_b32 v{WR}, v{CA}\nv_sub_f32 v{WI}, 0, v{CA+1}")
    direct(E1, 1.0)
    direct(E256, 256.0)
    direct(E8, 8.0)
    e(f"v_sub_f32 v{E8+1}, 0, v{E8+1}")
    bar(0)
    P.wait_vm("w2d")
    e("v_lshrrev_b32 v17, 5, v0\nv_bfe_u32 v45, v0, 2, 2\nv_lshl_add_u32 v17, v17, 2, v45\nv_lshlrev_b32 v17, 6, v17")
    e("v_bfe_u32 v45, v0, 4, 1\nv_lshl_add_u32 v17, v45, 5, v17\nv_and_b32 v45, 3, v0\nv_lshl_add_u32 v17, v45, 3, v17")
    for s in range(2):
        e(f"s_lshl_b32 s11, s{92+s}, 10\ns_add_u32 s11, s11, {L_W2S}\nv_add_u32 v45, s11, v17")
        for h in range(2):
            r = 128 + 4 * s + 2 * h
            P.ds(f"ds_read_b64_tr_b16 v[{r}:{r+1}], v45 offset:{h*512}", "w2t")
    put(0, None)
    put(1, E1)
    cmul(E2, E1, E1); put(2, E2)
    cmul(CA, E2, E1); put(3, CA)
    cmul(E4, E2, E2); put(4, E4)
    cmul(CA, E4, E1); put(5, CA)
    cmul(E6, E4, E2); put(6, E6)
    cmul(CA, E6, E1); put(7, CA)
    P.wait_lg("w2t")
    e("v_lshlrev_b32 v46, 4, v0")
    for s in range(2):
        e(f"s_mul_i32 s11, s50, 112\ns_add_u32 s11, s11, s51\ns_add_u32 s11, s11, s{92+s}\ns_lshl_b32 s11, s11, 10\ns_add_u32 s11, s11, {WS_W2}")
        r = 128 + 4 * s
        P.vmem(f"buffer_store_dwordx4 v[{r}:{r+3}], v46, {R_WS}, s11 offen sc1", "w2s")
    put(8, E256)
    cmul(CA, E256, E2); put(9, CA)
    cmul(CA, E256, E4); put(10, CA)
    cmul(CA, E256, E6); put(11, CA)
    cmul(E512, E256, E256); put(12, E512)
    cmul(CA, E512, E4); put(13, CA)
    cmul(CB, E512, E256); put(14, CB)
    cmul(CA, CB, E4); put(15, CA)
    frag_reads(RF, "rf0")
    bar(1)
    e("v_mov_b32 v47, 0")
    P.vmem(f"global_load_dword v45, v47, {P_DBG} sc1", "nonce")
    late_dma(4)
    cmul(CA, E512, E512); put(0, CA)
    cmul(CB, CA, E256); put(1, CB)
    cmul(CA, CB, E256); put(2, CA)
    cmul(CB, CA, E256); put(3, CB)
    cmul(CA, CB, E256); put(4, CA)
    put(5, CA)
    frag_reads(RF + 16, "rf1")
    P.wait_lg("rf1")
    cur, oth = CA, CB
    e(f"v_mov_b32 v{cur}, v{WR}\nv_mov_b32 v{cur+1}, v{WI}")
    state = {"cur": cur, "oth": oth}

    def cols(j0, j1):
        for j in range(j0, j1):
            if j > 0:
                cmul(state["oth"], state["cur"], E8)
                state["cur"], state["oth"] = state["oth"], state["cur"]
            put(j & 15, state["cur"])

    cols(0, 8)
    bar(2)
    late_dma(5)
    cols(8, 16)
    frag_reads(CF, "cf0")
    P.wait_lg("cf0")
    cols(16, 22)

    def kmfma(jt):
        for rt in range(2):
            a = KA + 8 * jt + 4 * rt
            for kk in range(4):
                c = "0" if kk == 0 else f"v[{a}:{a+3}]"
                cf = CF + 16 * jt + 4 * kk
                rf = RF + 16 * rt + 4 * kk
                e(f"v_mfma_f32_16x16x32_bf16 v[{a}:{a+3}], v[{cf}:{cf+3}], v[{rf}:{rf+3}], {c}")

    kmfma(0)
    bar(3)
    P.wait_vm(["nonce", "w2s"])
    e(f"v_readfirstlane_b32 s{S_TAG}, v45")
    e("s_nop 4")
    get_nonce_slow(45, 47)
    e(f"s_lshl_b32 s11, s{S_XCD}, 7\ns_lshl_b32 s12, s{S_SLOT}, 2\ns_add_u32 s11, s11, s12\ns_add_u32 s11, s11, s68\ns_lshl_b32 s11, s11, 2")
    e(f"s_add_u32 s11, s11, {FL_W}")
    flag_store(11, 128)
    e(f"v_mov_b32 v17, {L_MISC}\nv_mov_b32 v18, s{S_TAG}")
    P.ds("ds_write_b32 v17, v18", "z")
    late_dma(6)
    cols(22, 32)
    frag_reads(CF + 16, "cf1")
    P.wait_lg("cf1")
    kmfma(1)
    e(f"s_mul_i32 s11, s68, 4352\ns_add_u32 s11, s11, {L_S1}\nv_add_u32 v17, s11, v46")
    la, lb = P.label("ex"), P.label("ex")
    e(f"s_cmp_eq_u32 s94, 0\ns_cbranch_scc1 {la}")
    e(f"ds_write_b128 v17, v[{KA}:{KA+3}]\nds_write_b128 v17, v[{KA+4}:{KA+7}] offset:1024")
    e("s_waitcnt lgkmcnt(0)")
    for i in range(8):
        e(f"v_mov_b32 v{KA+i}, v{KA+8+i}")
    e(f"s_branch {lb}")
    e(f"{la}:")
    e("s_nop 7")
    e(f"ds_write_b128 v17, v[{KA+8}:{KA+11}]\nds_write_b128 v17, v[{KA+12}:{KA+15}] offset:1024")
    e(f"{lb}:")
    bar(4)
    late_dma(7)
    e(f"s_xor_b32 s11, s68, 1\ns_mul_i32 s11, s11, 4352\ns_add_u32 s11, s11, {L_S1}\nv_add_u32 v17, s11, v46")
    P.ds(f"ds_read_b128 v[{KA+8}:{KA+11}], v17", "exr")
    P.ds(f"ds_read_b128 v[{KA+12}:{KA+15}], v17 offset:1024", "exr")
    e("v_and_b32 v18, 15, v0")
    e("v_lshlrev_b32 v19, 1, v18\nv_add_u32 v19, 240, v19")
    e("v_bfe_u32 v20, v18, 1, 1\nv_lshlrev_b32 v20, 8, v20\nv_and_b32 v21, 1, v18\nv_lshl_add_u32 v20, v21, 2, v20\nv_add_u32 v20, 512, v20")
    e("v_cmp_gt_u32 vcc, 8, v18\nv_cndmask_b32 v19, v19, v18, vcc")
    e("v_cmp_lt_u32 vcc, 11, v18\nv_cndmask_b32 v19, v19, v20, vcc")
    e("v_lshlrev_b32 v20, 8, v18\nv_add_u32 v20, 1024, v20")
    e("v_lshrrev_b32 v21, 4, v0\nv_lshlrev_b32 v21, 5, v21\ns_lshl_b32 s11, s94, 7\nv_add_u32 v21, s11, v21")
    e("v_add_u32 v19, v19, v21\nv_add_u32 v20, v20, v21")
    e(f"s_mul_i32 s11, s69, {TABSZ}\ns_add_u32 s11, s11, {L_TAB - 2*CODE_LO}\nv_mov_b32 v22, s11")
    e(f"v_mov_b32 v23, {CODE_DUMMY}\ns_mov_b32 s12, {CODE_LO}")
    P.wait_lg("exr")
    for i in range(8):
        e(f"v_add_f32 v{KA+i}, v{KA+i}, v{KA+8+i}")
    for i in range(4):
        e(f"v_cvt_pk_bf16_f32 v{KA+8+i}, v{KA+2*i}, v{KA+2*i+1}")
    for rt in range(2):
        for r in range(4):
            e(f"v_add_u32 v24, {8*r}, v{19+rt}")
            e("v_cvt_f32_u32 v24, v24")
            e("v_add_u32 v24, 0xffff, v24")
            e("v_lshrrev_b32 v24, 16, v24")
            e("v_med3_u32 v24, v24, s12, v23")
            e(f"v_lshl_add_u32 v{25 + (r & 1)}, v24, 1, v22")
            src = KA + 8 + 2 * rt + (r >> 1)
            op = "ds_write_b16_d16_hi" if r & 1 else "ds_write_b16"
            P.ds(f"{op} v{25 + (r & 1)}, v{src}", "tw")
    bar(5)
    if is_g:
        e(f"s_lshl_b32 s11, s{S_RB}, 5\ns_add_u32 s11, s11, {FL_ST}")
        e("v_lshlrev_b32 v140, 2, v0\nv_add_u32 v140, s11, v140")
        e(f"s_lshl_b32 s11, s{S_FB}, 3\ns_add_u32 s11, s11, {FL_CS}")
        e("v_and_b32 v141, 1, v0\nv_lshlrev_b32 v141, 2, v141\nv_add_u32 v141, s11, v141")
        e("v_cmp_gt_u32 vcc, 8, v0\nv_cndmask_b32 v140, v141, v140, vcc")
    e(f"s_lshl_b32 s11, s{S_CT}, 9\ns_add_u32 s11, s11, {FL_W}")
    e("v_lshlrev_b32 v141, 2, v0\nv_add_u32 v141, s11, v141\nv_add_u32 v142, 256, v141")
    pa = [140, 141, 142] if is_g else [141, 142]
    for k, va in enumerate(pa):
        P.vmem(f"global_load_dword v{144+k}, v{va}, {P_WS} sc1", "pl")
    e("v_lshlrev_b32 v18, 4, v0\ns_lshl_b32 s11, s94, 10\nv_add_u32 v18, s11, v18")
    e("v_sub_u32 v19, 2047, v18\nv_cvt_f32_i32 v19, v19")
    e(f"v_mov_b32 v23, {CODE_ZERO}")
    KX, KE, KO = 80, 48, 60
    for k in range(9):
        e(f"v_subrev_f32 v20, {fbits(2*k)}, v19")
        e(f"v_subrev_f32 v21, {fbits(2*k+1)}, v19")
        e("v_cvt_pk_bf16_f32 v20, v20, v21")
        e("v_and_b32 v21, 0xffff, v20")
        e("v_med3_u32 v21, v21, s12, v23")
        e(f"v_lshl_add_u32 v{24+2*(k&1)}, v21, 1, v22")
        P.ds(f"ds_read_u16 v{KX+2*k}, v{24+2*(k&1)}", "kg")
        if k < 8:
            e("v_lshrrev_b32 v20, 16, v20")
            e("v_med3_u32 v20, v20, s12, v23")
            e(f"v_lshl_add_u32 v{25+2*(k&1)}, v20, 1, v22")
            P.ds(f"ds_read_u16 v{KX+2*k+1}, v{25+2*(k&1)}", "kg")
    e(f"s_mul_i32 s11, s69, 8320\ns_add_u32 s11, s11, {L_S1}")
    e("v_lshlrev_b32 v18, 1, v18\nv_add_u32 v18, s11, v18")
    e("v_and_b32 v20, 7, v0\nv_lshlrev_b32 v20, 2, v20\nv_add_u32 v20, s11, v20\nv_mov_b32 v21, 0")
    P.wait_lg0()
    for k in range(8):
        e(f"v_lshl_or_b32 v{KE+k}, v{KX+2*k+1}, 16, v{KX+2*k}")
        e(f"v_lshl_or_b32 v{KO+k}, v{KX+2*k+2}, 16, v{KX+2*k+1}")
    P.ds(f"ds_write_b128 v18, v[{KE}:{KE+3}]", "kr")
    P.ds(f"ds_write_b128 v18, v[{KE+4}:{KE+7}] offset:16", "kr")
    P.ds(f"ds_write_b128 v18, v[{KO}:{KO+3}] offset:4160", "kr")
    P.ds(f"ds_write_b128 v18, v[{KO+4}:{KO+7}] offset:4176", "kr")
    P.ds("ds_write_b32 v20, v21 offset:4096", "kr")
    P.ds(f"ds_write_b32 v20, v21 offset:{4160+4096}", "kr")
    bar(6)
    if is_g:
        P.wait_vm("C7")
    P.wait_vm("pl")
    ok = P.label("plok")
    e(f"v_cmp_ne_u32 vcc, s{S_TAG}, v144")
    for k in range(1, len(pa)):
        e(f"v_cmp_ne_u32 s[14:15], s{S_TAG}, v{144+k}\ns_or_b64 vcc, vcc, s[14:15]")
    e(f"s_cmp_eq_u64 vcc, 0\ns_cbranch_scc1 {ok}")
    poll(pa, 144)
    e(f"{ok}:")
    P.vm = []
    if is_g:
        l1, l2, l3 = P.label("sf"), P.label("sf"), P.label("sf")
        e(f"s_cmp_lg_u32 s68, 0\ns_cbranch_scc1 {l1}")
        e(f"s_lshl_b32 s11, s{S_RB}, 10\ns_add_u32 s11, s11, {WS_ST}\nv_add_u32 v17, s11, v46")
        e(f"global_load_dwordx4 v[144:147], v17, {P_WS} sc1")
        e("s_barrier")
        e(f"v_add_u32 v17, {L_STAT}, v46")
        e("s_waitcnt vmcnt(0)")
        e("ds_write_b128 v17, v[144:147]")
        e(f"s_branch {l3}")
        e(f"{l1}:")
        e(f"s_cmp_lg_u32 s68, 1\ns_cbranch_scc1 {l2}")
        e(f"s_lshl_b32 s11, s{S_FB}, 9\ns_add_u32 s11, s11, {WS_CS}\nv_and_b32 v17, 31, v0\nv_lshlrev_b32 v18, 4, v17\nv_add_u32 v17, s11, v18")
        e(f"global_load_dwordx4 v[144:147], v17, {P_WS} sc1")
        e("s_barrier")
        e(f"v_add_u32 v17, {L_STAT+1024}, v18")
        e("s_waitcnt vmcnt(0)")
        e("ds_write_b128 v17, v[144:147]")
        e(f"s_branch {l3}")
        e(f"{l2}:")
        e(f"s_lshl_b32 s11, s{S_FB}, 8\nv_lshlrev_b32 v18, 2, v0\nv_add_u32 v17, s11, v18")
        e(f"global_load_dword v144, v17, {P_B1}")
        e("s_barrier")
        e(f"v_lshlrev_b32 v17, 3, v0\nv_add_u32 v17, {L_STAT+1536}, v17")
        e("s_waitcnt vmcnt(0)")
        e("v_and_b32 v145, 0xffff0000, v144\nv_lshlrev_b32 v144, 16, v144")
        e("ds_write_b64 v17, v[144:145]")
        e(f"{l3}:")
    else:
        e("s_barrier")
    e("s_waitcnt lgkmcnt(0)")
    e("s_barrier")
    P.vm, P.lg = [], []
    nstamp[0] = 4
    stamp()


e("L_GA:")
aux_phase1(True)
e("L_AUX2:")
P.fence()
P.vm, P.lg = [], []
if DIAG:
    e(f"s_mul_i32 s11, s69, 8320\ns_add_u32 s11, s11, {L_S1}\ns_lshl_b32 s12, s94, 11\ns_add_u32 s11, s11, s12\nv_add_u32 v17, s11, v46")
    e("ds_read_b128 v[144:147], v17\nds_read_b128 v[148:151], v17 offset:1024")
    e(f"s_lshl_b32 s11, s95, 13\ns_add_u32 s11, s11, s12\ns_add_u32 s11, s11, {WS_DBG+0x100000}\nv_add_u32 v17, s11, v46")
    e("s_waitcnt lgkmcnt(0)")
    e(f"global_store_dwordx4 v17, v[144:147], {P_WS}\nglobal_store_dwordx4 v17, v[148:151], {P_WS} offset:1024")
SX, SB = 200, 208
e(f"s_and_b32 s11, s68, 1\ns_lshl_b32 s11, s11, 5\ns_lshl_b32 s12, s{S_RB2}, 6\ns_add_u32 s92, s11, s12")
e(f"s_lshr_b32 s11, s68, 1\ns_lshl_b32 s11, s11, 5\ns_lshl_b32 s12, s{S_CT}, 6\ns_add_u32 s93, s11, s12")
e("v_and_b32 v17, 31, v0\nv_add_u32 v17, s92, v17")
e("v_lshrrev_b32 v18, 5, v0\nv_lshlrev_b32 v18, 2, v18\nv_add_u32 v18, s93, v18")
e("v_lshlrev_b32 v19, 1, v18\nv_lshl_add_u32 v20, v17, 10, v19")
for qd in range(4):
    P.vmem(f"global_load_dwordx2 v[{SX+2*qd}:{SX+2*qd+1}], v20, {P_X} offset:{16*qd}", "sx")
    P.vmem(f"global_load_dwordx2 v[{SB+2*qd}:{SB+2*qd+1}], v19, {P_B2} offset:{16*qd}", "sx")
e("v_lshlrev_b32 v216, 1, v17\nv_lshl_add_u32 v216, v18, 12, v216")
e("s_lshl_b32 s11, s95, 1\nv_mov_b32 v17, s11")
P.vmem(f"global_load_ushort v217, v17, {P_DSK}", "sx")
e(f"s_mul_i32 s13, s68, 4608\ns_add_u32 s13, s13, {L_U}")
e("v_lshlrev_b32 v17, 3, v0\nv_add_u32 v17, s13, v17\nv_mov_b32 v18, 0\nv_mov_b32 v19, 0")
P.ds("ds_write_b64 v17, v[18:19]", "uz")
e(f"v_lshlrev_b32 v20, 2, v0\nv_add_u32 v20, {FL_XT}, v20\nv_add_u32 v21, 256, v20")
poll([20, 21], 22)
stamp()
e(f"s_lshl_b32 s11, s95, 12\ns_add_u32 s11, s11, {WS_XNT}\nv_add_u32 v17, s11, v46")
for i in range(4):
    P.vmem(f"global_load_dwordx4 v[{48+4*i}:{51+4*i}], v17, {P_WS} offset:{1024*i} sc1", "u")
e("v_add_u32 v17, s13, v46")
VA, VB = 4, 8
e("v_and_b32 v18, 15, v0\nv_lshrrev_b32 v19, 4, v0")
e("v_lshlrev_b32 v20, 3, v19\nv_sub_u32 v20, v20, v18\nv_add_u32 v20, 2031, v20\nv_lshrrev_b32 v20, 1, v20\nv_lshlrev_b32 v20, 2, v20")
e("v_and_b32 v21, 1, v18\nv_xor_b32 v21, 1, v21\nv_mul_u32_u24 v21, 4160, v21\nv_add_u32 v20, v20, v21")
e(f"s_mul_i32 s11, s69, 8320\ns_add_u32 s11, s11, {L_S1 - 512 - 192}\ns_lshl_b32 s12, s94, 8\ns_sub_u32 s11, s11, s12")
e(f"v_add_u32 v{VA}, s11, v20")
for ap in range(1, 4):
    e(f"v_subrev_u32 v{VA+ap}, {1024*ap}, v{VA}")
e("v_lshlrev_b32 v20, 5, v18\nv_lshl_add_u32 v20, v19, 4, v20")
e(f"s_add_u32 s11, s13, {480-192}\ns_sub_u32 s11, s11, s12\nv_add_u32 v{VB}, s11, v20")
P.wait_vm("u")
for i in range(4):
    P.ds(f"ds_write_b128 v17, v[{48+4*i}:{51+4*i}] offset:{512 + 1024*i}", "uw")
CACC = 16
FA = [48, 112]
FB = [80, 144]


def conv_reads(bp):
    s = bp & 1
    for al in range(8):
        ap, hi = al >> 1, al & 1
        o = 128 * (1 - hi) + 16 * (3 - bp)
        r = FA[s] + 4 * al
        P.ds(f"ds_read2_b32 v[{r}:{r+1}], v{VA+ap} offset0:{o} offset1:{o+1}", f"A{bp}_{al}")
        P.ds(f"ds_read2_b32 v[{r+2}:{r+3}], v{VA+ap} offset0:{o+2} offset1:{o+3}", f"A{bp}_{al}")
        r = FB[s] + 4 * al
        P.ds(f"ds_read_b128 v[{r}:{r+3}], v{VB} offset:{512*al + 64*(3-bp)}", f"B{bp}_{al}")


P.wait_lg0()
e("v_mov_b32 v9, v46")
stamp()
conv_reads(0)
first = set()
for bp in range(4):
    s = bp & 1
    nxt = []
    if bp + 1 < 4:
        save = P.lines
        P2l = []
        P.lines = P2l
        lg_before = list(P.lg)
        conv_reads(bp + 1)
        newtags = P.lg[len(lg_before):]
        P.lg = lg_before
        P.lines = save
        nxt = list(zip(P2l, newtags))
    order = []
    for m in range(8):
        for al in range(m + 1):
            for de in range(m + 1):
                if max(al, de) == m and al + de <= 7:
                    order.append((al, de))
    waited = -1
    for idx, (al, de) in enumerate(order):
        m = max(al, de)
        if m > waited:
            P.wait_lg([f"A{bp}_{m}", f"B{bp}_{m}"])
            waited = m
        tau = al + de
        a = CACC + 4 * tau
        c = f"v[{a}:{a+3}]" if tau in first else "0"
        first.add(tau)
        e(f"v_mfma_f32_16x16x32_bf16 v[{a}:{a+3}], v[{FA[s]+4*al}:{FA[s]+4*al+3}], v[{FB[s]+4*de}:{FB[s]+4*de+3}], {c}")
        if waited == 7 or idx >= 12:
            if nxt:
                ln, tg = nxt.pop(0)
                P.lines.append(ln)
                P.lg.append(tg)
    for ln, tg in nxt:
        P.lines.append(ln)
        P.lg.append(tg)
stamp()
e(f"s_xor_b32 s11, s68, 1\ns_lshl_b32 s11, s11, 12\ns_add_u32 s11, s11, {L_EX}\nv_add_u32 v10, s11, v9")
e(f"s_lshl_b32 s11, s68, 12\ns_add_u32 s11, s11, {L_EX}\nv_add_u32 v11, s11, v9")
la, lb = P.label("cx"), P.label("cx")
e(f"s_cmp_eq_u32 s94, 0\ns_cbranch_scc1 {la}")
for j in range(4):
    e(f"ds_write_b128 v10, v[{CACC+4*j}:{CACC+4*j+3}] offset:{1024*j}")
e("s_waitcnt lgkmcnt(0)")
for j in range(16):
    e(f"v_mov_b32 v{CACC+j}, v{CACC+16+j}")
e(f"s_branch {lb}")
e(f"{la}:")
e("s_nop 7")
for j in range(4):
    e(f"ds_write_b128 v10, v[{CACC+16+4*j}:{CACC+16+4*j+3}] offset:{1024*j}")
e(f"{lb}:")
e(f"s_lshl_b32 s11, s68, 2\ns_add_u32 s11, s11, {L_MISC+16}\nv_mov_b32 v12, s11\nv_mov_b32 v13, 1")
e("s_waitcnt lgkmcnt(0)")
e("ds_write_b32 v12, v13")
e("v_xor_b32 v12, 4, v12")
lp, ld = P.label("cxp"), P.label("cxd")
e(f"s_mov_b32 s12, {SPIN_MAX}")
e(f"{lp}:")
e("ds_read_b32 v13, v12")
e("s_waitcnt lgkmcnt(0)")
e("v_readfirstlane_b32 s11, v13")
e("s_nop 1")
e(f"s_cmp_lg_u32 s11, 0\ns_cbranch_scc1 {ld}")
e(f"s_sub_u32 s12, s12, 1\ns_cbranch_scc1 {ld}")
e(f"s_sleep 1\ns_branch {lp}")
e(f"{ld}:")
P.lg = []
for j in range(4):
    P.ds(f"ds_read_b128 v[{48+4*j}:{51+4*j}], v11 offset:{1024*j}", "cxr")
e("v_and_b32 v12, 15, v0\nv_lshlrev_b32 v12, 5, v12\nv_lshrrev_b32 v13, 4, v0\nv_lshl_add_u32 v12, v13, 3, v12")
e("s_lshl_b32 s12, s94, 11\ns_add_u32 s11, s13, s12\nv_add_u32 v13, s11, v12")
for j in range(4):
    P.ds(f"ds_read_b64 v[{64+2*j}:{65+2*j}], v13 offset:{512 + 512*j}", "cxr")
e(f"s_lshl_b32 s11, s95, 12\ns_add_u32 s11, s11, s12\ns_add_u32 s11, s11, {WS_AT}\nv_add_u32 v12, s11, v12")
P.wait_vm("sx")
e("v_lshlrev_b32 v217, 16, v217")
P.wait_lg0()
for j in range(4):
    a = CACC + 4 * j
    for r in range(4):
        e(f"v_add_f32 v{a+r}, v{a+r}, v{48+4*j+r}")
    for r in range(4):
        src = 64 + 2 * j + (r >> 1)
        if r & 1:
            e(f"v_and_b32 v14, 0xffff0000, v{src}")
        else:
            e(f"v_lshlrev_b32 v14, 16, v{src}")
        e(f"v_fmac_f32 v{a+r}, v14, v217")
    e(f"v_cvt_pk_bf16_f32 v{72+2*j}, v{a}, v{a+1}\nv_cvt_pk_bf16_f32 v{73+2*j}, v{a+2}, v{a+3}")
    P.vmem(f"global_store_dwordx2 v12, v[{72+2*j}:{73+2*j}], {P_WS} offset:{512*j} sc1", "at")
e(f"s_lshl_b32 s11, s2, 2\ns_add_u32 s11, s11, s68\ns_lshl_b32 s11, s11, 2\ns_add_u32 s11, s11, {FL_Y}")
P.wait_vm("at")
flag_store(11, 14)
stamp()
for qd in range(4):
    for hf in range(2):
        xs, bs = SX + 2 * qd + hf, SB + 2 * qd + hf
        d0 = 48 + 4 * qd + 2 * hf
        e(f"v_lshlrev_b32 v{d0}, 16, v{xs}\nv_lshlrev_b32 v14, 16, v{bs}\nv_add_f32 v{d0}, v{d0}, v14")
        e(f"v_and_b32 v{d0+1}, 0xffff0000, v{xs}\nv_and_b32 v14, 0xffff0000, v{bs}\nv_add_f32 v{d0+1}, v{d0+1}, v14")
for i in range(16):
    e(f"v_mov_b32 v{64+i}, 0")
e(f"s_lshl_b32 s11, s{S_CT}, 9\ns_add_u32 s11, s11, {FL_Y}")
e("v_lshlrev_b32 v20, 2, v0\nv_add_u32 v20, s11, v20\nv_add_u32 v21, 256, v20")
poll([20, 21], 22)
stamp()
for qd in range(4):
    for r in range(4):
        e(f"s_mov_b32 s11, {WS_AT + (8*qd + r)*4096}")
        P.vmem(f"buffer_load_short_d16_hi v{64+4*qd+r}, v216, {R_WS}, s11 offen sc1", "ay")
P.wait_vm0()
for i in range(16):
    e(f"v_add_f32 v{48+i}, v{48+i}, v{64+i}")
for j in range(4):
    e(f"ds_write_b128 v11, v[{48+4*j}:{51+4*j}] offset:{1024*j}")
e("s_waitcnt lgkmcnt(0)")
stamp()
e("s_barrier")
stamp_dump()
e("s_endpgm")

e("L_X:")
e(f"s_lshl_b32 s{S_RB}, s{S_XCD}, 2\ns_add_u32 s{S_RB}, s{S_RB}, s{S_SLOT}\ns_sub_u32 s{S_RB}, s{S_RB}, 28")
e(f"s_mov_b32 s{S_FB}, 0")
e(f"s_cmp_lt_u32 s{S_WAVE}, 4")
e("s_cbranch_scc1 L_XC")
aux_phase1(False)
e("s_branch L_AUX2")

e("L_XC:")
P.vm, P.lg = [], []
stamp_reset()
e("s_setprio 3")
e("s_waitcnt lgkmcnt(0)")
if DIAG:
    e("s_mov_b32 s72, s70")
    nstamp[0] = 1
build_srds()
XD, DD, WC = 16, 80, 208
e(f"s_lshl_b32 s11, s{S_RB}, 16\ns_lshl_b32 s12, s{S_WAVE}, 14\ns_add_u32 s11, s11, s12")
e("v_lshrrev_b32 v4, 3, v0\nv_and_b32 v5, 7, v0\nv_lshlrev_b32 v6, 4, v5\nv_lshl_add_u32 v7, v4, 10, v6\nv_add_u32 v7, s11, v7\nv_add_u32 v8, 8192, v7")
for gam in range(2):
    for i in range(8):
        r = XD + 32 * gam + 4 * i
        P.vmem(f"global_load_dwordx4 v[{r}:{r+3}], v{7+gam}, {P_X} offset:{128*i}", f"x{gam}")
e(f"s_min_u32 s92, s{S_RB}, 27")
e(f"s_lshl_b32 s11, s92, 7\ns_mul_i32 s12, s{S_WAVE}, {128*3584}\ns_add_u32 s93, s11, s12")
e("v_mul_u32_u24 v9, 3584, v4\nv_add_u32 v9, v9, v6")


def wc_load(i, dst):
    e(f"s_add_u32 s11, s93, {i*8*3584}")
    P.vmem(f"buffer_load_dwordx4 v[{dst}:{dst+3}], v9, {R_W1}, s11 offen", f"wc{i//8}")


e("v_mov_b32 v15, 0")
for i in range(8):
    wc_load(i, WC + 4 * i)
e("v_mov_b32 v10, 0x3f803f80")
e("s_barrier")


def red8(reg):
    e(f"v_add_f32_dpp v{reg}, v{reg}, v{reg} quad_perm:[1,0,3,2] row_mask:0xf bank_mask:0xf")
    e(f"v_add_f32_dpp v{reg}, v{reg}, v{reg} quad_perm:[2,3,0,1] row_mask:0xf bank_mask:0xf")
    e(f"v_add_f32_dpp v{reg}, v{reg}, v{reg} row_half_mirror row_mask:0xf bank_mask:0xf")


def ln_stats(gam):
    xd = XD + 32 * gam
    dd = DD + 64 * gam
    a0, a1 = 11, 12
    P.wait_vm(f"x{gam}")
    for j in range(32):
        a = a0 + (j & 1)
        c = "0" if j < 2 else f"v{a}"
        e(f"v_dot2_f32_bf16 v{a}, v{xd+j}, v10, {c}")
    e(f"v_add_f32 v{a0}, v{a0}, v{a1}")
    red8(a0)
    m = 240 + 4 * gam
    e(f"v_mul_f32 v{m}, {fbits(1/512)}, v{a0}")
    e(f"v_cvt_pk_bf16_f32 v{m+2}, v{m}, v{m}")
    e(f"v_lshlrev_b32 v{m+2}, 16, v{m+2}")
    e(f"v_sub_f32 v{m+1}, v{m}, v{m+2}")
    for j in range(32):
        d = dd + 2 * j
        e(f"v_lshlrev_b32 v{d}, 16, v{xd+j}")
        e(f"v_and_b32 v{d+1}, 0xffff0000, v{xd+j}")
        e(f"v_pk_add_f32 v[{d}:{d+1}], v[{d}:{d+1}], v[{m+2}:{m+3}] op_sel:[0,0] op_sel_hi:[1,0] neg_lo:[0,1] neg_hi:[0,1]")
        if j == 0:
            e(f"v_pk_mul_f32 v[12:13], v[{d}:{d+1}], v[{d}:{d+1}]")
        else:
            e(f"v_pk_fma_f32 v[12:13], v[{d}:{d+1}], v[{d}:{d+1}], v[12:13]")
    e("v_add_f32 v12, v12, v13")
    red8(12)
    e(f"v_mul_f32 v12, {fbits(1/512)}, v12")
    e(f"v_fma_f32 v12, -v{m+1}, v{m+1}, v12")
    e("v_max_f32 v12, 0, v12")
    e("v_cvt_pk_bf16_f32 v12, v12, v12\nv_lshlrev_b32 v12, 16, v12")
    e(f"v_add_f32 v12, {fbits(1e-5)}, v12")
    e("v_cvt_pk_bf16_f32 v12, v12, v12\nv_lshlrev_b32 v12, 16, v12")
    e("v_sqrt_f32 v12, v12")
    e("v_cvt_pk_bf16_f32 v12, v12, v12\nv_lshlrev_b32 v12, 16, v12")
    s = 248 + 2 * gam
    e(f"v_rcp_f32 v{s}, v12")
    e(f"v_fma_f32 v13, -v12, v{s}, 2.0")
    e(f"v_mul_f32 v{s}, v{s}, v13")
    e(f"v_mul_f32 v{s+1}, v{m+2}, v{s}")


ln_stats(0)
for i in range(8, 16):
    wc_load(i, XD + 4 * (i - 8))
P.vmem(f"global_load_dword v14, v15, {P_DBG} sc1", "nonce")
e("s_barrier")
ln_stats(1)
stamp()
e("v_cmp_eq_u32 vcc, 1, v5")
e("v_cndmask_b32 v252, v248, v250, vcc\nv_cndmask_b32 v253, v249, v251, vcc")
e(f"s_lshl_b32 s11, s{S_RB}, 9\ns_lshl_b32 s12, s{S_WAVE}, 7\ns_add_u32 s11, s11, s12\ns_add_u32 s11, s11, {WS_ST}")
e("v_lshl_add_u32 v11, v5, 3, v4\nv_lshlrev_b32 v11, 3, v11\nv_add_u32 v11, s11, v11")
e("v_cmp_gt_u32 vcc, 2, v5")
e("s_and_saveexec_b64 s[14:15], vcc")
P.vmem(f"global_store_dwordx2 v11, v[252:253], {P_WS} sc1", "sts")
e("s_mov_b64 exec, -1")
e("s_barrier")
CSA = 240


def cs_acc(src, firstload):
    for j in range(4):
        if firstload:
            e(f"v_lshlrev_b32 v{CSA+2*j}, 16, v{src+j}\nv_and_b32 v{CSA+2*j+1}, 0xffff0000, v{src+j}")
        else:
            e(f"v_lshlrev_b32 v12, 16, v{src+j}\nv_and_b32 v13, 0xffff0000, v{src+j}")
            e(f"v_pk_add_f32 v[{CSA+2*j}:{CSA+2*j+1}], v[{CSA+2*j}:{CSA+2*j+1}], v[12:13]")


P.wait_vm("wc0")
for i in range(8):
    cs_acc(WC + 4 * i, i == 0)
P.wait_vm(["nonce", "sts"])
e(f"v_readfirstlane_b32 s{S_TAG}, v14")
e("s_nop 4")
get_nonce_slow(14, 15)
e(f"s_lshl_b32 s11, s{S_RB}, 2\ns_add_u32 s11, s11, s{S_WAVE}\ns_lshl_b32 s95, s11, 2\ns_add_u32 s11, s95, {FL_ST}")
flag_store(11, 12)
stamp()
for i in range(8):
    cs_acc(XD + 4 * i, False)
L_CSS = 73728
e(f"s_lshl_b32 s11, s{S_WAVE}, 11\ns_add_u32 s11, s11, {L_CSS}\nv_lshlrev_b32 v11, 5, v0\nv_add_u32 v11, s11, v11")
P.ds(f"ds_write_b128 v11, v[{CSA}:{CSA+3}]", "c")
P.ds(f"ds_write_b128 v11, v[{CSA+4}:{CSA+7}] offset:16", "c")
P.wait_lg0()
e("s_barrier")
lab = P.label("cs")
e(f"s_cmp_lg_u32 s{S_WAVE}, 0\ns_cbranch_scc1 {lab}")
e(f"v_lshlrev_b32 v11, 2, v0\nv_add_u32 v11, {L_CSS}, v11")
for i in range(16):
    e(f"ds_read2st64_b32 v[{WC+2*i}:{WC+2*i+1}], v11 offset0:{2*i} offset1:{2*i+1}")
e("s_waitcnt lgkmcnt(0)")
for i in range(1, 16):
    e(f"v_pk_add_f32 v[{WC}:{WC+1}], v[{WC}:{WC+1}], v[{WC+2*i}:{WC+2*i+1}]")
e(f"v_add_f32 v{WC}, v{WC}, v{WC+1}")
e(f"s_lshl_b32 s11, s92, 8\ns_add_u32 s11, s11, {WS_CS}\nv_lshlrev_b32 v11, 2, v0\nv_add_u32 v11, s11, v11")
e(f"global_store_dword v11, v{WC}, {P_WS} sc1")
e("s_waitcnt vmcnt(0)")
e(f"s_lshl_b32 s11, s{S_RB}, 2\ns_add_u32 s11, s11, {FL_CS}")
flag_store(11, 12)
e(f"{lab}:")
stamp()
e(f"s_lshl_b32 s11, s{S_WAVE}, 4\nv_add_u32 v11, s11, v4")
e(f"v_mul_u32_u24 v11, 1056, v11\ns_lshl_b32 s11, s{S_WAVE}, 8\nv_add3_u32 v11, v11, s11, v6")
for gam in range(2):
    s = 248 + 2 * gam
    for i in range(8):
        for j in range(4):
            d = DD + 64 * gam + 8 * i + 2 * j
            e(f"v_pk_mul_f32 v[{d}:{d+1}], v[{d}:{d+1}], v[{s}:{s+1}] op_sel:[0,0] op_sel_hi:[1,0]")
        r = XD + 32 * gam + 4 * i
        for j in range(4):
            d = DD + 64 * gam + 8 * i + 2 * j
            e(f"v_cvt_pk_bf16_f32 v{r+j}, v{d}, v{d+1}")
        P.ds(f"ds_write_b128 v11, v[{r}:{r+3}] offset:{gam*(8*1056+128) + 128*i}", "xw")
    if gam == 0:
        e("s_barrier")
P.wait_lg0()
e("s_barrier")
stamp()
e("v_lshrrev_b32 v4, 4, v0\nv_bfe_u32 v5, v0, 2, 2\nv_lshl_add_u32 v5, v4, 3, v5\nv_mul_u32_u24 v5, 1056, v5\nv_lshl_add_u32 v5, v4, 7, v5")
e(f"v_and_b32 v6, 3, v0\nv_lshl_add_u32 v5, v6, 3, v5\ns_lshl_b32 s11, s{S_WAVE}, 8\nv_add_u32 v5, s11, v5")
e("v_and_b32 v6, 15, v0\nv_lshlrev_b32 v6, 12, v6\nv_lshl_add_u32 v6, v4, 4, v6")
e(f"s_lshl_b32 s11, s{S_WAVE}, 19\ns_lshl_b32 s12, s{S_RB}, 7\ns_add_u32 s93, s11, s12\ns_add_u32 s93, s93, {WS_XNT}")
for db in range(8):
    for lb in range(2):
        r = DD + 8 * db + 4 * lb
        for h in range(2):
            P.ds(f"ds_read_b64_tr_b16 v[{r+2*h}:{r+2*h+1}], v5 offset:{lb*(32*1056+512) + h*4224 + db*32}", f"t{db}")
for db in range(8):
    P.wait_lg(f"t{db}")
    e(f"s_add_u32 s11, s93, {db*65536}")
    for lb in range(2):
        r = DD + 8 * db + 4 * lb
        P.vmem(f"buffer_store_dwordx4 v[{r}:{r+3}], v6, {R_WS}, s11 offen offset:{lb*64} sc1", "xt")
e("s_barrier")
P.wait_vm0()
e(f"s_add_u32 s11, s95, {FL_XT}")
flag_store(11, 12)
stamp()
e("s_barrier")
e("s_barrier")
e("s_setprio 0")
e(f"v_lshlrev_b32 v{V_LANE16}, 4, v0")
g2_setup_offsets()
e(f"s_mul_i32 s13, s{S_WAVE}, 24576")
for k in range(16):
    for d in range(2):
        w2_load(k, d)
e("s_branch L_G2JOIN")
e("L_END:")
e("s_endpgm")

body = pad_hazards(P.lines)
hdr = f"""; Fused LayerNorm + S4 conv + GELU MLP, one persistent launch (generated by work/gen.py)
; @launch grid=(256,1,1) block=(512,1,1) lds={LDS_BYTES}
.amdgcn_target "amdgcn-amd-amdhsa--gfx950"
.text
.globl {KNAME}
.p2align 8
.type {KNAME},@function
"""
tail = f"""
.section .rodata,"a"
.p2align 6
.amdhsa_kernel {KNAME}
  .amdhsa_next_free_vgpr 256
  .amdhsa_next_free_sgpr 102
  .amdhsa_accum_offset 256
  .amdhsa_group_segment_fixed_size 0
  .amdhsa_kernarg_size 136
  .amdhsa_user_sgpr_count 2
  .amdhsa_user_sgpr_kernarg_segment_ptr 1
  .amdhsa_system_sgpr_workgroup_id_x 1
.end_amdhsa_kernel
"""
open(OUT, "w").write(hdr + "\n".join(body) + tail)
print("wrote", OUT, len(body), "lines")
```

```python
import sys, struct, math
from asmlib import Prog, pad_hazards

DIAG = "--diag" in sys.argv
OUT = [a for a in sys.argv[1:] if not a.startswith("--")]
OUT = OUT[0] if OUT else "parallel_sum__ssm_conv_s4__dense_activation_gelu__prompt.s"
KNAME = "parallel_sum__ssm_conv_s4__dense_activation_gelu__prompt_kernel"


def fbits(x):
    return "0x%08x" % struct.unpack("<I", struct.pack("<f", x))[0]


WS_H = 0x000000
WS_W2 = 0x800000
WS_XNT = 0xA00000
WS_AT = 0xC00000
WS_ST = 0xE00000
WS_CS = 0xE04000
WS_FL = 0xE10000
FL_ST = WS_FL + 0
FL_CS = WS_FL + 512
FL_XT = WS_FL + 1024
FL_W = WS_FL + 2048
FL_H = WS_FL + 8192
FL_Y = WS_FL + 12288
WS_DBG = 0xF00000
L_U = 98304
L_EX = 116736
L_W2S = 131072
L_TAB = 138240
L_S1 = 143936
L_STAT = 161344
L_MISC = 163392
LDS_BYTES = 163840
TABSZ = 2832
CODE_LO = 0x3F7F
CODE_DUMMY = 0x4501
CODE_ZERO = 0x4502
SPIN_MAX = 200000

S_WAVE, S_XCD, S_SLOT, S_RB, S_FB, S_RB2, S_CT, S_TAG = 3, 4, 5, 6, 7, 8, 9, 10
P_X, P_ARE, P_AIM, P_BRE, P_BIM, P_CRE, P_CIM, P_LDT = [f"s[{16+2*i}:{17+2*i}]" for i in range(8)]
P_DSK, P_BX, P_W1, P_B1, P_W2, P_B2, P_OUT, P_DBG = [f"s[{32+2*i}:{33+2*i}]" for i in range(8)]
P_WS = "s[48:49]"
R_X, R_W1, R_W2, R_WS = "s[52:55]", "s[56:59]", "s[60:63]", "s[64:67]"

P = Prog()
e = P.e
nstamp = [0]


def stamp_reset():
    nstamp[0] = 0


def stamp():
    if not DIAG:
        return
    i = nstamp[0]
    nstamp[0] += 1
    assert i < 24
    e("s_waitcnt lgkmcnt(0)")
    e("s_memtime s[70:71]")
    e("s_waitcnt lgkmcnt(0)")
    e(f"s_mov_b32 s{72+i}, s70")
    P.lg = []


def stamp_dump():
    if not DIAG:
        return
    e("s_waitcnt vmcnt(0) lgkmcnt(0)")
    e(f"s_lshl_b32 s11, s2, 3\ns_add_u32 s11, s11, s{S_WAVE}\ns_lshl_b32 s11, s11, 7")
    e(f"s_add_u32 s11, s11, {WS_DBG}")
    e("v_mov_b32 v1, s11")
    for i in range(24):
        e(f"v_mov_b32 v2, s{72+i}")
        e(f"global_store_dword v1, v2, {P_WS} offset:{4*i}")
    e("s_memrealtime s[70:71]\ns_waitcnt lgkmcnt(0)\nv_mov_b32 v2, s70")
    e(f"global_store_dword v1, v2, {P_WS} offset:96")
    e("v_mov_b32 v2, s96")
    e(f"global_store_dword v1, v2, {P_WS} offset:100")


def srd(name, ptr_lo, nbytes):
    b = int(name[2:].split(":")[0])
    e(f"s_mov_b32 s{b}, s{ptr_lo}")
    e(f"s_and_b32 s{b+1}, s{ptr_lo+1}, 0xffff")
    e(f"s_mov_b32 s{b+2}, {nbytes}")
    e(f"s_mov_b32 s{b+3}, 0x00020000")


def build_srds():
    srd(R_X, 16, 2048 * 512 * 2)
    srd(R_W1, 36, 512 * 1792 * 2)
    srd(R_W2, 40, 1792 * 512 * 2)
    srd(R_WS, 48, 0x10000000)


def poll(vaddrs, vtmp, base=P_WS, sleep=8):
    L = P.label("poll")
    D = P.label("polld")
    e(f"s_mov_b32 s12, {SPIN_MAX}")
    e(f"{L}:")
    for k, va in enumerate(vaddrs):
        e(f"global_load_dword v{vtmp+k}, v{va}, {base} sc1")
    e("s_waitcnt vmcnt(0)")
    e(f"v_cmp_ne_u32 vcc, s{S_TAG}, v{vtmp}")
    for k in range(1, len(vaddrs)):
        e(f"v_cmp_ne_u32 s[14:15], s{S_TAG}, v{vtmp+k}")
        e("s_or_b64 vcc, vcc, s[14:15]")
    e("s_cmp_eq_u64 vcc, 0")
    e(f"s_cbranch_scc1 {D}")
    e("s_sub_u32 s12, s12, 1")
    e(f"s_cbranch_scc1 {D}")
    e(f"s_sleep {sleep}")
    e(f"s_branch {L}")
    e(f"{D}:")
    P.vm = []


def get_nonce_slow(vtmp, vzero):
    L = P.label("nonce")
    D = P.label("nonced")
    e(f"s_mov_b32 s12, {SPIN_MAX}")
    e(f"{L}:")
    e(f"s_cmp_lg_u32 s{S_TAG}, 0")
    e(f"s_cbranch_scc1 {D}")
    e("s_sub_u32 s12, s12, 1")
    e(f"s_cbranch_scc1 {D}")
    e("s_sleep 2")
    e(f"global_load_dword v{vtmp}, v{vzero}, {P_DBG} sc1")
    e("s_waitcnt vmcnt(0)")
    e(f"v_readfirstlane_b32 s{S_TAG}, v{vtmp}")
    e("s_nop 4")
    e(f"s_branch {L}")
    e(f"{D}:")


def flag_store(s_off, vtmp):
    e(f"v_mov_b32 v{vtmp}, s{s_off}")
    e(f"v_mov_b32 v{vtmp+1}, s{S_TAG}")
    e("s_mov_b64 exec, 1")
    P.vmem(f"global_store_dword v{vtmp}, v{vtmp+1}, {P_WS} sc1", "flag")
    e("s_mov_b64 exec, -1")


M_TAG, M_PAIR, M_CNTW, M_CNTY, M_XT, M_Y, M_W2L, M_CNTX = [L_MISC + o for o in (0, 16, 32, 36, 40, 44, 48, 64)]


def lds_spin(vaddr, vtmp, sleep=1):
    lp, ld = P.label("lsp"), P.label("lsd")
    e(f"s_mov_b32 s12, {SPIN_MAX}")
    e(f"{lp}:")
    e(f"ds_read_b32 v{vtmp}, v{vaddr}")
    e("s_waitcnt lgkmcnt(0)")
    e(f"v_readfirstlane_b32 s11, v{vtmp}")
    e("s_nop 1")
    e(f"s_cmp_lg_u32 s11, 0\ns_cbranch_scc1 {ld}")
    e(f"s_sub_u32 s12, s12, 1\ns_cbranch_scc1 {ld}")
    e(f"s_sleep {sleep}\ns_branch {lp}")
    e(f"{ld}:")
    P.lg = []


def combine_flag(cnt_addr, s_off, vtmp):
    lab = P.label("cmb")
    e(f"v_mov_b32 v{vtmp}, {cnt_addr}\nv_mov_b32 v{vtmp+1}, 1")
    e("s_mov_b64 exec, 1")
    e(f"ds_add_rtn_u32 v{vtmp+1}, v{vtmp}, v{vtmp+1}")
    e("s_waitcnt lgkmcnt(0)")
    e(f"v_readfirstlane_b32 s12, v{vtmp+1}")
    e("s_mov_b64 exec, -1")
    e(f"s_cmp_lg_u32 s12, 3\ns_cbranch_scc1 {lab}")
    sv = list(P.vm)
    flag_store(s_off, vtmp)
    P.vm = sv
    e(f"{lab}:")
    P.lg = []


e(f"{KNAME}:")
e("s_load_dwordx16 s[16:31], s[0:1], 0")
e("s_load_dwordx16 s[32:47], s[0:1], 64")
e("s_load_dwordx2 s[48:49], s[0:1], 128")
if DIAG:
    e("s_memtime s[70:71]")
    e("s_memrealtime s[96:97]")
e("s_cmp_ge_u32 s2, 256")
e("s_cbranch_scc1 L_END")
e("v_lshrrev_b32 v1, 6, v0")
e("v_and_b32 v0, 63, v0")
e(f"v_readfirstlane_b32 s{S_WAVE}, v1")
e(f"s_and_b32 s{S_XCD}, s2, 7")
e(f"s_lshr_b32 s{S_SLOT}, s2, 3")
e(f"s_lshr_b32 s11, s{S_SLOT}, 3")
e(f"s_lshl_b32 s{S_RB2}, s{S_XCD}, 2")
e(f"s_add_u32 s{S_RB2}, s{S_RB2}, s11")
e(f"s_and_b32 s{S_CT}, s{S_SLOT}, 7")
e(f"s_mov_b32 s{S_TAG}, 0")
if DIAG:
    for i in range(24):
        e(f"s_mov_b32 s{72+i}, 0")
e(f"s_cmp_ge_u32 s{S_SLOT}, 28")
e("s_cbranch_scc1 L_X")

e(f"s_mul_i32 s11, s{S_SLOT}, 37\ns_lshr_b32 s11, s11, 8")
e(f"s_mul_i32 s12, s11, 7\ns_sub_u32 s12, s{S_SLOT}, s12")
e(f"s_lshr_b32 s{S_RB}, s{S_XCD}, 1\ns_lshl_b32 s{S_RB}, s{S_RB}, 2\ns_add_u32 s{S_RB}, s{S_RB}, s11")
e(f"s_and_b32 s{S_FB}, s{S_XCD}, 1\ns_mul_i32 s{S_FB}, s{S_FB}, 7\ns_add_u32 s{S_FB}, s{S_FB}, s12")
e("s_lshl_b32 s60, s11, 1\ns_add_u32 s60, s60, s12")
if "--norot1" in sys.argv:
    e("s_mov_b32 s60, 0")
e("""v_lshrrev_b32 v4, 3, v0
v_lshrrev_b32 v5, 4, v0
v_and_b32 v6, 7, v0
v_xor_b32 v6, v6, v5
v_lshlrev_b32 v6, 4, v6
v_lshl_add_u32 v1, v4, 10, v6
v_xor_b32 v2, 64, v1
v_and_b32 v6, 15, v0
v_lshlrev_b32 v7, 2, v5
v_xor_b32 v6, v6, v7
v_lshlrev_b32 v6, 4, v6
v_mul_u32_u24 v3, 3584, v5
v_add_u32 v3, v3, v6""")
e(f"s_cmp_ge_u32 s{S_WAVE}, 4")
e("s_cbranch_scc1 L_GA")
e(f"s_lshl_b32 s98, s{S_RB}, 17")
e(f"s_lshl_b32 s99, s{S_FB}, 8")
e(f"s_lshl_b32 s11, s{S_WAVE}, 15\ns_add_u32 s13, s98, s11")
e(f"s_mul_i32 s11, s{S_WAVE}, 57344\ns_add_u32 s14, s99, s11")
e(f"s_lshl_b32 s15, s{S_WAVE}, 12")


def ring_dma(kc, i):
    st = kc % 4
    pc = i >> 1
    if i == 0:
        e(f"s_add_u32 s11, s60, {kc}\ns_and_b32 s11, s11, 7")
        e("s_lshl_b32 s61, s11, 7\ns_add_u32 s61, s61, s13\ns_mul_i32 s62, s11, 229376\ns_add_u32 s62, s62, s14")
    if i & 1 == 0:
        e(f"s_add_u32 m0, s15, {st*32768 + pc*1024}")
        e(f"s_add_u32 s11, s61, {pc*8192}")
        P.vmem(f"buffer_load_dwordx4 v{1+(pc&1)}, {R_X}, s11 offen lds", f"C{kc}")
    else:
        e(f"s_add_u32 m0, s15, {st*32768 + 16384 + pc*1024}")
        e(f"s_add_u32 s11, s62, {pc*14336}")
        P.vmem(f"buffer_load_dwordx4 v3, {R_W1}, s11 offen lds", f"C{kc}")


P.vm, P.lg = [], []
stamp_reset()
e("s_waitcnt lgkmcnt(0)")
if DIAG:
    e("s_mov_b32 s72, s70")
    nstamp[0] = 1
srd(R_X, 16, 2048 * 512 * 2)
srd(R_W1, 36, 512 * 1792 * 2)
for kc in range(2):
    for i in range(8):
        ring_dma(kc, i)
srd(R_WS, 48, 0x10000000)
stamp()
e(f"s_lshr_b32 s68, s{S_WAVE}, 1")
e(f"s_and_b32 s69, s{S_WAVE}, 1")
VXA, VXB, VWA, VWB = 48, 52, 56, 58
e("v_and_b32 v4, 31, v0")
e("s_lshl_b32 s11, s69, 6")
e("v_add_u32 v4, s11, v4")
e("v_lshrrev_b32 v5, 5, v0")
e("v_bfe_u32 v6, v0, 1, 3")
e("v_xor_b32 v6, v6, v5")
e("v_lshlrev_b32 v6, 4, v6")
e(f"v_lshl_add_u32 v{VXA}, v4, 7, v6")
for t in range(1, 4):
    e(f"v_xor_b32 v{VXA+t}, {t << 5}, v{VXA}")
for t in range(4):
    e(f"v_add_u32 v{VXB+t}, 0x10000, v{VXA+t}")
e("v_bfe_u32 v4, v0, 2, 2")
e("v_lshl_add_u32 v6, v5, 3, v4")
e("v_bfe_u32 v7, v0, 4, 1")
e("v_lshlrev_b32 v7, 1, v7")
e("v_bfe_u32 v8, v0, 1, 1")
e("v_add_u32 v7, v7, v8")
e("s_lshl_b32 s11, s68, 3")
e("v_add_u32 v7, s11, v7")
e("v_lshlrev_b32 v4, 2, v4")
e("v_xor_b32 v7, v7, v4")
e("v_lshlrev_b32 v7, 4, v7")
e("v_lshl_add_u32 v7, v6, 8, v7")
e("v_and_b32 v8, 1, v0")
e("v_lshl_add_u32 v7, v8, 3, v7")
e("s_lshl_b32 s11, s69, 6")
e("v_xor_b32 v7, s11, v7")
e(f"v_add_u32 v{VWA}, 16384, v7")
e(f"v_xor_b32 v{VWA+1}, 64, v{VWA}")
e(f"v_add_u32 v{VWB}, 0x10000, v{VWA}")
e(f"v_add_u32 v{VWB+1}, 0x10000, v{VWA+1}")
ACC = 192


def acc(ft, lt):
    b = ACC + 32 * ft + 16 * lt
    return b


def g1_reads(n):
    c, t = divmod(n, 4)
    st = c % 4
    hi = st >= 2
    so = (st & 1) * 32768
    b = 16 + 16 * (n & 1)
    vx = (VXB if hi else VXA) + t
    vw = VWB if hi else VWA
    tag = f"R{n}"
    for ft in range(2):
        for h in range(2):
            r = b + 8 + 4 * ft + 2 * h
            P.ds(f"ds_read_b64_tr_b16 v[{r}:{r+1}], v{vw+ft} offset:{so + t*4096 + h*1024}", tag)
        P.ds(f"ds_read_b128 v[{b+4*ft}:{b+4*ft+3}], v{vx} offset:{so + ft*4096}", tag)


SEL, CSUM = 8, 12
e("v_and_b32 v4, 15, v0\nv_bfe_u32 v5, v0, 4, 1\nv_cmp_eq_u32 vcc, v4, v5\nv_mov_b32 v5, 0x3f803f80")
for i in range(4):
    e(f"v_cndmask_b32 v{SEL+i}, 0, v5, vcc")
W2R = 64
V_LANE16 = 60
e(f"v_lshlrev_b32 v{V_LANE16}, 4, v0")


def g2_setup_offsets():
    e(f"s_mul_i32 s11, s{S_CT}, {2*112*1024}")
    e(f"s_mul_i32 s12, s63, {28*1024}")
    e("s_add_u32 s11, s11, s12")
    e(f"s_add_u32 s50, s11, {WS_W2}")
    e(f"s_mul_i32 s11, s{S_RB2}, {2*112*1024}")
    e("s_add_u32 s51, s11, s12")
    e(f"s_lshr_b32 s11, s{S_SLOT}, 3\ns_mul_i32 s11, s11, 7\ns_mul_i32 s12, s{S_CT}, 7\ns_lshr_b32 s12, s12, 1\ns_add_u32 s11, s11, s12")
    e("s_cmp_ge_u32 s11, 28\ns_cselect_b32 s12, 28, 0\ns_sub_u32 s11, s11, s12\ns_lshl_b32 s100, s11, 10")
    if "--norot2" in sys.argv:
        e("s_mov_b32 s100, 0")
    e("s_mov_b32 s101, s100")


def kstep_adv(reg):
    e(f"s_add_u32 s{reg}, s{reg}, 1024\ns_cmp_eq_u32 s{reg}, 28672\ns_cselect_b32 s{reg}, 0, s{reg}")


def w2_load(k, d):
    r = W2R + 8 * k + 4 * d
    e("s_add_u32 s11, s50, s100" if d == 0 else f"s_add_u32 s11, s11, {112*1024}")
    P.vmem(f"buffer_load_dwordx4 v[{r}:{r+3}], v{V_LANE16}, {R_WS}, s11 offen sc1", "w2r")
    if d == 1:
        kstep_adv(100)


e(f"s_mov_b32 s63, s{S_WAVE}")
g2_setup_offsets()


def g1_mfma(n, fill):
    b = 16 + 16 * (n & 1)
    c = "0" if n == 0 else f"v[{CSUM}:{CSUM+3}]"
    e(f"v_mfma_f32_16x16x32_bf16 v[{CSUM}:{CSUM+3}], v[{SEL}:{SEL+3}], v[{b+8}:{b+11}], {c}")
    for ii, (ft, lt) in enumerate(((0, 0), (0, 1), (1, 0), (1, 1))):
        a = acc(ft, lt)
        c = "0" if n == 0 else f"v[{a}:{a+15}]"
        e(f"v_mfma_f32_32x32x16_bf16 v[{a}:{a+15}], v[{b+8+4*ft}:{b+8+4*ft+3}], v[{b+4*lt}:{b+4*lt+3}], {c}")
        for f in fill[ii]:
            f()


N_EARLY_W2 = 6
P.wait_vm("C0")
stamp()
e("s_barrier")
g1_reads(0)
for n in range(32):
    if n + 1 < 32:
        if (n + 1) % 4 == 0:
            c1 = (n + 1) // 4
            P.wait_lg(f"R{n}")
            if c1 in (2, 5):
                stamp()
            P.wait_vm(f"C{c1}")
            stamp()
            e("s_barrier")
        g1_reads(n + 1)
    P.wait_lg(f"R{n}")
    fill = [[], [], [], []]
    if n < 3:
        lst = [(2 + j // 8, j % 8) for j in range(16)][(0, 6, 11)[n]:(6, 11, 16)[n]]
        for j, it in enumerate(lst):
            fill[j % 4].append(lambda it=it: ring_dma(*it))
        fl = [lambda it=it: ring_dma(*it) for it in lst]
        fill = [fl[0:2], fl[2:3], fl[3:5], fl[5:]] if len(fl) == 6 else [fl[0:2], fl[2:3], fl[3:4], fl[4:]]
    else:
        m = n + 1
        cb, tt = divmod(m, 4)
        if 1 <= cb <= 4:
            fill[0].append(lambda cb=cb, tt=tt: ring_dma(cb + 3, 2 * tt))
            fill[2].append(lambda cb=cb, tt=tt: ring_dma(cb + 3, 2 * tt + 1))
        elif m >= 24 and m - 24 < N_EARLY_W2:
            fill[1].append(lambda k=m - 24: (w2_load(k, 0), w2_load(k, 1)))
    g1_mfma(n, fill)
e(f"s_lshl_b32 s11, s68, 8\ns_lshl_b32 s12, s69, 7\ns_add_u32 s11, s11, s12\ns_add_u32 s11, s11, {L_STAT+1024}")
e("v_lshlrev_b32 v4, 2, v0\nv_add_u32 v4, s11, v4")
e("s_mov_b64 exec, 0xffff")
e(f"ds_write2_b32 v4, v{CSUM}, v{CSUM+1} offset0:0 offset1:16")
e("s_mov_b64 exec, -1")
e("s_waitcnt lgkmcnt(0)")
e("s_barrier")
stamp()
e("s_setprio 2")

e("v_and_b32 v8, 31, v0")
e("s_lshl_b32 s11, s69, 6")
e("v_add_u32 v8, s11, v8")
e("v_lshlrev_b32 v8, 3, v8")
e(f"v_add_u32 v8, {L_STAT}, v8")
P.ds("ds_read_b64 v[0+2:0+3], v8".replace("0+2", "2").replace("0+3", "3"), "st")
P.ds("ds_read_b64 v[6:7], v8 offset:256", "st")
e("v_lshrrev_b32 v61, 5, v0")
e("v_lshlrev_b32 v61, 4, v61")
e(f"s_lshl_b32 s11, s68, 8\ns_lshl_b32 s12, s69, 7\ns_add_u32 s11, s11, s12\ns_add_u32 s11, s11, {L_STAT+1024}")
e("v_add_u32 v61, s11, v61")
e("v_xor_b32 v62, 128, v61")
e(f"v_mov_b32 v63, {M_TAG}")
P.ds("ds_read_b32 v63, v63", "tag")
CS, B1 = 16, 32


def cs_reads(ft, qds):
    for qd in qds:
        P.ds(f"ds_read_b128 v[{CS+4*qd}:{CS+4*qd+3}], v{61+ft} offset:{qd*32}", f"cs{ft}_{qd>>1}")
        P.ds(f"ds_read_b128 v[{B1+4*qd}:{B1+4*qd+3}], v{61+ft} offset:{512 + qd*32}", f"cs{ft}_{qd>>1}")


cs_reads(0, range(4))
K1 = -2.0 * math.sqrt(2.0 / math.pi) * math.log2(math.e)
e(f"s_mov_b32 s14, {fbits(K1*0.044715)}\ns_mov_b32 s15, {fbits(K1*0.044715)}")
e(f"v_mov_b32 v12, {fbits(K1)}\nv_mov_b32 v13, {fbits(K1)}")
e("v_mov_b32 v14, 1.0\nv_mov_b32 v15, 1.0")
e(f"s_lshl_b32 s11, s{S_RB}, 2\ns_lshl_b32 s12, s69, 1\ns_add_u32 s11, s11, s12\ns_mul_i32 s11, s11, {112*1024}")
e(f"s_lshl_b32 s12, s{S_FB}, 13\ns_add_u32 s11, s11, s12\ns_lshl_b32 s12, s68, 12\ns_add_u32 s11, s11, s12")
e("s_lshl_b32 s12, s69, 11\ns_add_u32 s98, s11, s12\ns_xor_b32 s99, s98, 2048")
P.wait_lg(["st", "tag"])
for b in (2, 6):
    e(f"v_sub_f32 v{b+2}, 0, v{b+1}\nv_sub_f32 v{b+3}, 0, v{b+1}\nv_mov_b32 v{b+1}, v{b}")
e(f"v_readfirstlane_b32 s{S_TAG}, v63")
TP = [48, 50, 52, 54]
UP = [56, 58, 10, 62]


def gelu_group(ft, lt, half, mid=None):
    a0 = acc(ft, lt) + 8 * half
    ri, mr = 2 + 4 * lt, 4 + 4 * lt
    up = TP
    tp = [a0 + 2 * i for i in range(4)]
    for i in range(4):
        r = 8 * half + 2 * i
        e(f"v_pk_fma_f32 v[{up[i]}:{up[i]+1}], v[{CS+r}:{CS+r+1}], v[{mr}:{mr+1}], v[{B1+r}:{B1+r+1}]")
    if mid:
        mid()
    for i in range(4):
        e(f"v_pk_fma_f32 v[{tp[i]}:{tp[i]+1}], v[{tp[i]}:{tp[i]+1}], v[{ri}:{ri+1}], v[{up[i]}:{up[i]+1}]")
    for i in range(4):
        e(f"v_pk_mul_f32 v[{up[i]}:{up[i]+1}], v[{tp[i]}:{tp[i]+1}], v[{tp[i]}:{tp[i]+1}]")
    for i in range(4):
        e(f"v_pk_fma_f32 v[{up[i]}:{up[i]+1}], v[{up[i]}:{up[i]+1}], s[14:15], v[12:13]")
    for i in range(4):
        e(f"v_pk_mul_f32 v[{up[i]}:{up[i]+1}], v[{up[i]}:{up[i]+1}], v[{tp[i]}:{tp[i]+1}]")
    for i in range(4):
        e(f"v_exp_f32 v{up[i]}, v{up[i]}\nv_exp_f32 v{up[i]+1}, v{up[i]+1}")
    for i in range(4):
        e(f"v_pk_add_f32 v[{up[i]}:{up[i]+1}], v[{up[i]}:{up[i]+1}], v[14:15]")
    for i in range(4):
        e(f"v_rcp_f32 v{up[i]}, v{up[i]}\nv_rcp_f32 v{up[i]+1}, v{up[i]+1}")
    for i in range(4):
        e(f"v_pk_mul_f32 v[{up[i]}:{up[i]+1}], v[{tp[i]}:{tp[i]+1}], v[{up[i]}:{up[i]+1}]")
    for i in range(4):
        e(f"v_cvt_pk_bf16_f32 v{a0+i}, v{up[i]}, v{up[i]+1}")
    e(f"s_add_u32 s11, s{98+ft}, {lt*112*1024 + half*1024}")
    P.vmem(f"buffer_store_dwordx4 v[{a0}:{a0+3}], v{V_LANE16}, {R_WS}, s11 offen sc1", "hst")


for ft in range(2):
    for half in range(2):
        for lt in range(2):
            P.wait_lg(f"cs{ft}_{half}")
            mid = None
            if ft == 0 and lt == 1:
                mid = lambda half=half: cs_reads(1, (2 * half, 2 * half + 1))
            gelu_group(ft, lt, half, mid)
stamp()
e(f"s_lshl_b32 s11, s{S_RB}, 1\ns_add_u32 s11, s11, s69\ns_lshl_b32 s11, s11, 5")
e(f"s_lshl_b32 s12, s{S_FB}, 1\ns_add_u32 s11, s11, s12\ns_add_u32 s11, s11, s68\ns_lshl_b32 s11, s11, 2")
e(f"s_add_u32 s99, s11, {FL_H}")
P.wait_vm("hst")
flag_store(99, 10)
stamp()
e("L_G2JOIN:")
for k in range(N_EARLY_W2, 16):
    for d in range(2):
        w2_load(k, d)
e(f"s_mul_i32 s13, s{S_WAVE}, 24576")
e("v_min_u32 v4, 6, v0")
e(f"s_lshl_b32 s11, s{S_RB2}, 5\ns_mul_i32 s12, s{S_WAVE}, 7\ns_add_u32 s11, s11, s12\ns_lshl_b32 s11, s11, 2")
e(f"s_add_u32 s11, s11, {FL_H}")
e("v_lshlrev_b32 v4, 2, v4")
e("v_add_u32 v4, s11, v4")
nstamp[0] = 15
poll([4], 5, sleep=4)
stamp()
HR = 12
HD = 6


def h_load(k):
    s = k % HD
    for lt in range(2):
        r = HR + 8 * s + 4 * lt
        e("s_add_u32 s11, s51, s101" if lt == 0 else f"s_add_u32 s11, s11, {112*1024}")
        P.vmem(f"buffer_load_dwordx4 v[{r}:{r+3}], v{V_LANE16}, {R_WS}, s11 offen sc1", f"h{k}")
    kstep_adv(101)


e(f"v_add_u32 v4, s13, v{V_LANE16}")


def w2l_read(k):
    kk = k - 16
    for d in range(2):
        r = W2R + 8 * kk + 4 * d
        P.ds(f"ds_read_b128 v[{r}:{r+3}], v4 offset:{(kk*2+d)*1024}", f"wl{k}")


def q(dt2, lt2):
    return ACC + 16 * (2 * dt2 + lt2)


for k in range(HD):
    h_load(k)
for k in range(28):
    if k == 2:
        e(f"s_lshl_b32 s11, s{S_WAVE}, 2\ns_add_u32 s11, s11, {M_W2L}\nv_mov_b32 v5, s11")
        lds_spin(5, 6)
    if 2 <= k < 14:
        w2l_read(k + 14)
    if k >= 16:
        P.wait_lg(f"wl{k}")
    P.wait_vm(f"h{k}")
    if k == 0:
        stamp()
    wr = W2R + 8 * (k if k < 16 else k - 16)
    hr = HR + 8 * (k % HD)
    for dt2, lt2 in ((0, 0), (0, 1), (1, 0), (1, 1)):
        a = q(dt2, lt2)
        c = "0" if k == 0 else f"v[{a}:{a+15}]"
        e(f"v_mfma_f32_32x32x16_bf16 v[{a}:{a+15}], v[{wr+4*dt2}:{wr+4*dt2+3}], v[{hr+4*lt2}:{hr+4*lt2+3}], {c}")
    if k + HD < 28:
        h_load(k + HD)
stamp()
P.wait_lg0()
e("s_nop 11")
for w in range(4):
    lab = f"L_RW{w}"
    e(f"s_cmp_eq_u32 s{S_WAVE}, {w}")
    e(f"s_cbranch_scc1 {lab}")
    a = ACC + 16 * w
    for j in range(4):
        e(f"ds_write_b128 v4, v[{a+4*j}:{a+4*j+3}] offset:{w*4096 + j*1024}")
    e(f"{lab}:")
for w in range(4):
    lab = f"L_RM{w}"
    e(f"s_cmp_lg_u32 s{S_WAVE}, {w}")
    e(f"s_cbranch_scc1 {lab}")
    a = ACC + 16 * w
    for j in range(16):
        e(f"v_mov_b32 v{16+j}, v{a+j}")
    e(f"{lab}:")
e(f"s_lshl_b32 s12, s{S_WAVE}, 12")
for i in range(1, 4):
    e(f"s_add_u32 s11, s{S_WAVE}, {i}\ns_and_b32 s11, s11, 3\ns_mul_i32 s11, s11, 24576\ns_add_u32 s11, s11, s12")
    e(f"v_add_u32 v{4+i}, s11, v{V_LANE16}")
e(f"s_add_u32 s11, s12, {L_EX}")
e(f"v_add_u32 v8, s11, v{V_LANE16}")
e(f"s_and_b32 s11, s{S_WAVE}, 1\ns_lshl_b32 s11, s11, 5\ns_lshl_b32 s12, s{S_RB2}, 6\ns_add_u32 s11, s11, s12\ns_lshl_b32 s11, s11, 10")
e(f"s_lshr_b32 s12, s{S_WAVE}, 1\ns_lshl_b32 s12, s12, 6\ns_add_u32 s11, s11, s12\ns_lshl_b32 s12, s{S_CT}, 7\ns_add_u32 s11, s11, s12")
e("v_and_b32 v9, 31, v0\nv_lshlrev_b32 v9, 10, v9\nv_lshrrev_b32 v10, 5, v0\nv_lshl_add_u32 v9, v10, 4, v9\nv_add_u32 v9, s11, v9")
e("s_waitcnt lgkmcnt(0)")
e("s_barrier")
stamp()
P.lg = []
for i in range(4):
    for j in range(4):
        r = 64 + 16 * i + 4 * j
        P.ds(f"ds_read_b128 v[{r}:{r+3}], v{5+i} offset:{j*1024}", f"p{i}")
for i in range(4):
    P.wait_lg(f"p{i}")
    for j in range(8):
        r = 64 + 16 * i + 2 * j
        e(f"v_pk_add_f32 v[{16+2*j}:{17+2*j}], v[{16+2*j}:{17+2*j}], v[{r}:{r+1}]")
for j in range(8):
    e(f"v_cvt_pk_bf16_f32 v{32+j}, v{16+2*j}, v{17+2*j}")
for pr in range(2):
    b = 32 + 4 * pr
    e(f"v_permlane32_swap_b32 v{b}, v{b+2}")
    e(f"v_permlane32_swap_b32 v{b+1}, v{b+3}")
for pr in range(2):
    b = 32 + 4 * pr
    e(f"global_store_dwordx4 v9, v[{b}:{b+3}], {P_OUT} offset:{pr*32}")
stamp()
stamp_dump()
e("s_endpgm")


def aux_phase1(is_g):
    P.vm, P.lg = [], []
    stamp_reset()
    e("s_setprio 2" if is_g else "s_setprio 1")
    e(f"s_sub_u32 s68, s{S_WAVE}, 4")
    e("s_lshr_b32 s69, s68, 1")
    e("s_and_b32 s94, s68, 1")
    e("s_lshl_b32 s95, s2, 1\ns_add_u32 s95, s95, s69")
    e("s_lshl_b32 s11, s95, 8\ns_lshl_b32 s12, s94, 7\ns_add_u32 s11, s11, s12")
    e("v_lshlrev_b32 v17, 1, v0\nv_add_u32 v17, s11, v17")
    e("s_lshl_b32 s11, s95, 1\nv_mov_b32 v18, s11")
    e(f"s_and_b32 s11, s{S_SLOT}, 1\ns_lshl_b32 s12, s{S_XCD}, 1\ns_add_u32 s50, s11, s12")
    e(f"s_lshr_b32 s11, s{S_SLOT}, 1\ns_mul_i32 s51, s11, 7")
    e("v_lshrrev_b32 v19, 2, v0\nv_and_b32 v20, 3, v0\nv_lshlrev_b32 v20, 4, v20\nv_lshl_add_u32 v19, v19, 10, v20")
    e("v_mov_b32 v47, 0")
    e(f"s_lshl_b32 s11, s{S_XCD}, 8\ns_lshl_b32 s12, s{S_SLOT}, 3\ns_add_u32 s11, s11, s12\ns_lshl_b32 s12, s68, 1\ns_add_u32 s13, s11, s12")
    e("v_lshrrev_b32 v21, 5, v0\nv_add_u32 v21, s13, v21\nv_and_b32 v22, 31, v0\nv_lshlrev_b32 v22, 4, v22\nv_lshl_add_u32 v22, v21, 10, v22")
    e(f"v_lshlrev_b32 v139, 3, v21\nv_add_u32 v139, {WS_ST}, v139")
    e(f"v_lshlrev_b32 v23, 2, v0\nv_add_u32 v23, {L_MISC}, v23")
    e("ds_write_b32 v23, v47")
    e(f"v_mov_b32 v23, {L_TAB + 2*(CODE_ZERO-CODE_LO)}")
    e("ds_write_b16 v23, v47")
    e(f"ds_write_b16 v23, v47 offset:{TABSZ}")
    e("s_waitcnt lgkmcnt(0)")
    if DIAG:
        e("s_mov_b32 s72, s70")
        nstamp[0] = 1
    P.vmem(f"global_load_dwordx4 v[48:51], v22, {P_X}", "xr")
    P.vmem(f"global_load_dwordx4 v[52:55], v22, {P_X} offset:512", "xr")
    for i, p in enumerate((P_ARE, P_AIM, P_BRE, P_BIM, P_CRE, P_CIM)):
        P.vmem(f"global_load_ushort v{4+i}, v17, {p}", "par")
    P.vmem(f"global_load_ushort v10, v18, {P_LDT}", "par")
    if is_g:
        lab = P.label("nn")
        e(f"s_add_u32 s11, s2, s68\ns_cmp_lg_u32 s11, 0\ns_cbranch_scc1 {lab}")
        e("s_memrealtime s[70:71]\ns_waitcnt lgkmcnt(0)")
        e("s_mul_i32 s11, s70, 0x9E3779B1\ns_or_b32 s11, s11, 1")
        e("v_mov_b32 v18, s11")
        e(f"global_store_dword v47, v18, {P_DBG} sc1")
        e(f"{lab}:")
    srd(R_W2, 40, 1792 * 512 * 2)
    srd(R_WS, 48, 0x10000000)
    for s in range(2):
        e(f"s_lshl_b32 s11, s68, 1\ns_add_u32 s11, s11, {s}\ns_min_u32 s{92+s}, s11, 6")
        e(f"s_lshl_b32 s11, s{92+s}, 10\ns_add_u32 m0, s11, {L_W2S}")
        e(f"s_add_u32 s11, s51, s{92+s}\ns_lshl_b32 s11, s11, 14\ns_lshl_b32 s12, s50, 6\ns_add_u32 s11, s11, s12")
        P.vmem(f"buffer_load_dwordx4 v19, {R_W2}, s11 offen lds", "w2d")
    stamp()

    def bar(c):
        if is_g or c in (4, 5, 6):
            P.wait_lg0()
            if is_g:
                stamp()
            e("s_barrier")

    ZR, ZI, WR, WI, T0, T1 = 11, 12, 13, 14, 15, 16
    E1, E2, E4, E6, CA, CB, E8, E256, E512 = 18, 20, 22, 24, 26, 28, 30, 32, 34
    PK = 36
    WB, RB = 40, 44
    RF, CF, KA = 48, 80, 112

    def cmul(d, a, b):
        e(f"v_mul_f32 v{T0}, v{a+1}, v{b+1}")
        e(f"v_mul_f32 v{T1}, v{a+1}, v{b}")
        e(f"v_fma_f32 v{d}, v{a}, v{b}, -v{T0}")
        e(f"v_fma_f32 v{d+1}, v{a}, v{b+1}, v{T1}")

    def direct(d, a):
        e(f"v_mul_f32 v{T0}, {fbits(a)}, v{ZR}")
        e(f"v_mul_f32 v{T1}, {fbits(a)}, v{ZI}")
        e(f"v_exp_f32 v{T0}, v{T0}")
        e(f"v_fract_f32 v{T1}, v{T1}")
        e(f"v_cos_f32 v{d}, v{T1}")
        e(f"v_sin_f32 v{d+1}, v{T1}")
        e(f"v_mul_f32 v{d}, v{T0}, v{d}")
        e(f"v_mul_f32 v{d+1}, v{T0}, v{d+1}")

    pend = []

    def put(row, reg):
        slot = PK + (row & 1) + 2 * ((row >> 1) & 1)
        if reg is None:
            e(f"v_mov_b32 v{slot}, 0x3f80")
        else:
            e(f"v_cvt_pk_bf16_f32 v{slot}, v{reg}, v{reg+1}")
        if row & 1:
            o = 136 * ((row >> 1) & 1)
            P.ds(f"ds_write2_b32 v{WB + (row >> 2)}, v{slot-1}, v{slot} offset0:{o} offset1:{o+68}", "kw")

    def frag_reads(dst, tag):
        for kk in range(4):
            P.ds(f"ds_read_b128 v[{dst+4*kk}:{dst+4*kk+3}], v{RB} offset:{kk*64}", tag)

    e(f"s_mul_i32 s11, s68, 4352\ns_add_u32 s11, s11, {L_S1}")
    e("v_lshlrev_b32 v17, 2, v0")
    e(f"v_add_u32 v{WB}, s11, v17")
    for i in range(1, 4):
        e(f"v_add_u32 v{WB+i}, {i*4*272}, v{WB}")
    e("v_and_b32 v17, 15, v0\nv_mul_u32_u24 v17, 272, v17\nv_lshrrev_b32 v18, 4, v0\nv_lshl_add_u32 v17, v18, 4, v17")
    e(f"v_add_u32 v{RB}, s11, v17")
    if not is_g:
        e("s_barrier")

    def red32(reg, tmp):
        for m in ("quad_perm:[1,0,3,2]", "quad_perm:[2,3,0,1]", "row_half_mirror", "row_mirror"):
            e(f"v_add_f32_dpp v{reg}, v{reg}, v{reg} {m} row_mask:0xf bank_mask:0xf")
        e(f"v_mov_b32 v{tmp}, v{reg}")
        e(f"v_permlane16_swap_b32 v{reg}, v{tmp}")
        e(f"v_add_f32 v{reg}, v{reg}, v{tmp}")

    P.wait_vm("xr")
    XU = 56
    for j in range(8):
        e(f"v_lshlrev_b32 v{XU+2*j}, 16, v{48+j}\nv_and_b32 v{XU+2*j+1}, 0xffff0000, v{48+j}")
    e(f"v_pk_add_f32 v[72:73], v[{XU}:{XU+1}], v[{XU+2}:{XU+3}]")
    for j in range(2, 8):
        e(f"v_pk_add_f32 v[72:73], v[72:73], v[{XU+2*j}:{XU+2*j+1}]")
    e("v_add_f32 v72, v72, v73")
    red32(72, 73)
    e(f"v_mul_f32 v72, {fbits(1/512)}, v72")
    e("v_cvt_pk_bf16_f32 v138, v72, v72")
    e("v_lshlrev_b32 v74, 16, v138\nv_sub_f32 v73, v72, v74")
    e("v_sub_f32 v74, 0, v74\nv_mov_b32 v75, v74")
    for j in range(8):
        e(f"v_pk_add_f32 v[{XU+2*j}:{XU+2*j+1}], v[{XU+2*j}:{XU+2*j+1}], v[74:75]")
    e(f"v_pk_mul_f32 v[76:77], v[{XU}:{XU+1}], v[{XU}:{XU+1}]")
    for j in range(1, 8):
        e(f"v_pk_fma_f32 v[76:77], v[{XU+2*j}:{XU+2*j+1}], v[{XU+2*j}:{XU+2*j+1}], v[76:77]")
    e("v_add_f32 v76, v76, v77")
    red32(76, 77)
    e(f"v_mul_f32 v76, {fbits(1/512)}, v76")
    e("v_fma_f32 v76, -v73, v73, v76")
    e("v_max_f32 v76, 0, v76")
    e("v_cvt_pk_bf16_f32 v76, v76, v76\nv_lshlrev_b32 v76, 16, v76")
    e(f"v_add_f32 v76, {fbits(1e-5)}, v76")
    e("v_cvt_pk_bf16_f32 v76, v76, v76\nv_lshlrev_b32 v76, 16, v76")
    e("v_sqrt_f32 v76, v76")
    e("v_cvt_pk_bf16_f32 v136, v72, v76")
    P.wait_vm("par")
    stamp()
    for i in range(7):
        e(f"v_lshlrev_b32 v{4+i}, 16, v{4+i}")
    e(f"v_mul_f32 v10, {fbits(math.log2(math.e))}, v10")
    e("v_exp_f32 v10, v10")
    e("v_cvt_pk_bf16_f32 v10, v10, v10")
    e("v_lshlrev_b32 v10, 16, v10")
    e(f"v_mul_f32 v{ZR}, v10, v4\nv_mul_f32 v{ZI}, v10, v5")
    e(f"v_mul_f32 v{ZR}, {fbits(math.log2(math.e))}, v{ZR}\nv_mul_f32 v{ZI}, {fbits(1/(2*math.pi))}, v{ZI}")
    e("v_mul_f32 v6, v10, v6\nv_mul_f32 v7, v10, v7")
    cmul(CA, 8, 6)
    e(f"v_mov_b32 v{WR}, v{CA}\nv_sub_f32 v{WI}, 0, v{CA+1}")
    direct(E1, 1.0)
    direct(E256, 256.0)
    direct(E8, 8.0)
    e(f"v_sub_f32 v{E8+1}, 0, v{E8+1}")
    bar(0)
    P.wait_vm("w2d")
    e("v_lshrrev_b32 v17, 5, v0\nv_bfe_u32 v45, v0, 2, 2\nv_lshl_add_u32 v17, v17, 2, v45\nv_lshlrev_b32 v17, 6, v17")
    e("v_bfe_u32 v45, v0, 4, 1\nv_lshl_add_u32 v17, v45, 5, v17\nv_and_b32 v45, 3, v0\nv_lshl_add_u32 v17, v45, 3, v17")
    for s in range(2):
        e(f"s_lshl_b32 s11, s{92+s}, 10\ns_add_u32 s11, s11, {L_W2S}\nv_add_u32 v45, s11, v17")
        for h in range(2):
            r = 128 + 4 * s + 2 * h
            P.ds(f"ds_read_b64_tr_b16 v[{r}:{r+1}], v45 offset:{h*512}", "w2t")
    put(0, None)
    put(1, E1)
    cmul(E2, E1, E1); put(2, E2)
    cmul(CA, E2, E1); put(3, CA)
    cmul(E4, E2, E2); put(4, E4)
    cmul(CA, E4, E1); put(5, CA)
    cmul(E6, E4, E2); put(6, E6)
    cmul(CA, E6, E1); put(7, CA)
    P.wait_lg("w2t")
    e("v_lshlrev_b32 v46, 4, v0")
    for s in range(2):
        e(f"s_mul_i32 s11, s50, 112\ns_add_u32 s11, s11, s51\ns_add_u32 s11, s11, s{92+s}\ns_lshl_b32 s11, s11, 10\ns_add_u32 s11, s11, {WS_W2}")
        r = 128 + 4 * s
        P.vmem(f"buffer_store_dwordx4 v[{r}:{r+3}], v46, {R_WS}, s11 offen sc1", "w2s")
    P.vmem(f"global_load_dword v45, v47, {P_DBG} sc1", "nonce")
    put(8, E256)
    cmul(CA, E256, E2); put(9, CA)
    cmul(CA, E256, E4); put(10, CA)
    cmul(CA, E256, E6); put(11, CA)
    cmul(E512, E256, E256); put(12, E512)
    cmul(CA, E512, E4); put(13, CA)
    cmul(CB, E512, E256); put(14, CB)
    cmul(CA, CB, E4); put(15, CA)
    frag_reads(RF, "rf0")
    bar(1)
    cmul(CA, E512, E512); put(0, CA)
    cmul(CB, CA, E256); put(1, CB)
    cmul(CA, CB, E256); put(2, CA)
    cmul(CB, CA, E256); put(3, CB)
    cmul(CA, CB, E256); put(4, CA)
    put(5, CA)
    frag_reads(RF + 16, "rf1")
    P.wait_lg("rf1")
    cur, oth = CA, CB
    e(f"v_mov_b32 v{cur}, v{WR}\nv_mov_b32 v{cur+1}, v{WI}")
    state = {"cur": cur, "oth": oth}

    def cols(j0, j1):
        for j in range(j0, j1):
            if j > 0:
                cmul(state["oth"], state["cur"], E8)
                state["cur"], state["oth"] = state["oth"], state["cur"]
            put(j & 15, state["cur"])

    cols(0, 8)
    bar(2)
    P.wait_vm(["nonce", "w2s"])
    e(f"v_readfirstlane_b32 s{S_TAG}, v45")
    e("s_nop 4")
    get_nonce_slow(45, 47)
    e(f"v_mov_b32 v137, s{S_TAG}")
    e("s_mov_b32 exec_lo, 1\ns_mov_b32 exec_hi, 1")
    P.vmem(f"global_store_dwordx2 v139, v[136:137], {P_WS} sc1", "gr")
    e("s_mov_b64 exec, -1")
    e(f"v_mov_b32 v17, {M_TAG}")
    P.ds("ds_write_b32 v17, v137", "z")
    e(f"s_lshl_b32 s11, s{S_XCD}, 5\ns_add_u32 s11, s11, s{S_SLOT}\ns_lshl_b32 s11, s11, 2\ns_add_u32 s11, s11, {FL_W}")
    combine_flag(M_CNTW, 11, 128)
    if not is_g:
        e("s_barrier")
    cols(8, 16)
    frag_reads(CF, "cf0")
    P.wait_lg("cf0")
    cols(16, 22)

    def kmfma(jt):
        for rt in range(2):
            a = KA + 8 * jt + 4 * rt
            for kk in range(4):
                c = "0" if kk == 0 else f"v[{a}:{a+3}]"
                cf = CF + 16 * jt + 4 * kk
                rf = RF + 16 * rt + 4 * kk
                e(f"v_mfma_f32_16x16x32_bf16 v[{a}:{a+3}], v[{cf}:{cf+3}], v[{rf}:{rf+3}], {c}")

    P.wait_lg(["rf0", "rf1"])
    kmfma(0)
    bar(3)
    cols(22, 32)
    frag_reads(CF + 16, "cf1")
    P.wait_lg("cf1")
    kmfma(1)
    e(f"s_mul_i32 s11, s68, 4352\ns_add_u32 s11, s11, {L_S1}\nv_add_u32 v17, s11, v46")
    la, lb = P.label("ex"), P.label("ex")
    e(f"s_cmp_eq_u32 s94, 0\ns_cbranch_scc1 {la}")
    e(f"ds_write_b128 v17, v[{KA}:{KA+3}]\nds_write_b128 v17, v[{KA+4}:{KA+7}] offset:1024")
    e("s_waitcnt lgkmcnt(0)")
    for i in range(8):
        e(f"v_mov_b32 v{KA+i}, v{KA+8+i}")
    e(f"s_branch {lb}")
    e(f"{la}:")
    e("s_nop 7")
    e(f"ds_write_b128 v17, v[{KA+8}:{KA+11}]\nds_write_b128 v17, v[{KA+12}:{KA+15}] offset:1024")
    e(f"{lb}:")
    bar(4)
    e(f"s_lshl_b32 s11, s{S_RB}, 10\ns_add_u32 s11, s11, {WS_ST}\nv_add_u32 v140, s11, v46")
    e(f"s_lshl_b32 s11, s{S_CT}, 7\ns_add_u32 s11, s11, {FL_W}\nv_and_b32 v141, 31, v0\nv_lshlrev_b32 v141, 2, v141\nv_add_u32 v141, s11, v141")
    q1, q2, q3 = P.label("q"), P.label("q"), P.label("q")
    e(f"s_cmp_lg_u32 s68, 1\ns_cbranch_scc1 {q1}")
    e(f"global_load_dword v144, v141, {P_WS} sc1")
    e(f"{q1}:")
    if is_g:
        e(f"s_cmp_lg_u32 s68, 0\ns_cbranch_scc1 {q2}")
        e(f"global_load_dwordx4 v[144:147], v140, {P_WS} sc1")
        e(f"{q2}:")
        e(f"s_cmp_lg_u32 s68, 2\ns_cbranch_scc1 {q3}")
        e(f"s_lshl_b32 s11, s{S_FB}, 8\nv_lshlrev_b32 v142, 2, v0\nv_add_u32 v142, s11, v142")
        e(f"global_load_dword v144, v142, {P_B1}")
        e(f"{q3}:")
    e(f"s_xor_b32 s11, s68, 1\ns_mul_i32 s11, s11, 4352\ns_add_u32 s11, s11, {L_S1}\nv_add_u32 v17, s11, v46")
    P.ds(f"ds_read_b128 v[{KA+8}:{KA+11}], v17", "exr")
    P.ds(f"ds_read_b128 v[{KA+12}:{KA+15}], v17 offset:1024", "exr")
    e("v_and_b32 v18, 15, v0")
    e("v_lshlrev_b32 v19, 1, v18\nv_add_u32 v19, 240, v19")
    e("v_bfe_u32 v20, v18, 1, 1\nv_lshlrev_b32 v20, 8, v20\nv_and_b32 v21, 1, v18\nv_lshl_add_u32 v20, v21, 2, v20\nv_add_u32 v20, 512, v20")
    e("v_cmp_gt_u32 vcc, 8, v18\nv_cndmask_b32 v19, v19, v18, vcc")
    e("v_cmp_lt_u32 vcc, 11, v18\nv_cndmask_b32 v19, v19, v20, vcc")
    e("v_lshlrev_b32 v20, 8, v18\nv_add_u32 v20, 1024, v20")
    e("v_lshrrev_b32 v21, 4, v0\nv_lshlrev_b32 v21, 5, v21\ns_lshl_b32 s11, s94, 7\nv_add_u32 v21, s11, v21")
    e("v_add_u32 v19, v19, v21\nv_add_u32 v20, v20, v21")
    e(f"s_mul_i32 s11, s69, {TABSZ}\ns_add_u32 s11, s11, {L_TAB - 2*CODE_LO}\nv_mov_b32 v22, s11")
    e(f"v_mov_b32 v23, {CODE_DUMMY}\ns_mov_b32 s12, {CODE_LO}")
    P.wait_lg("exr")
    for i in range(8):
        e(f"v_add_f32 v{KA+i}, v{KA+i}, v{KA+8+i}")
    for i in range(4):
        e(f"v_cvt_pk_bf16_f32 v{KA+8+i}, v{KA+2*i}, v{KA+2*i+1}")
    for rt in range(2):
        for r in range(4):
            e(f"v_add_u32 v24, {8*r}, v{19+rt}")
            e("v_cvt_f32_u32 v24, v24")
            e("v_add_u32 v24, 0xffff, v24")
            e("v_lshrrev_b32 v24, 16, v24")
            e("v_med3_u32 v24, v24, s12, v23")
            e(f"v_lshl_add_u32 v{25 + (r & 1)}, v24, 1, v22")
            src = KA + 8 + 2 * rt + (r >> 1)
            op = "ds_write_b16_d16_hi" if r & 1 else "ds_write_b16"
            P.ds(f"{op} v{25 + (r & 1)}, v{src}", "tw")
    bar(5)
    e("v_lshlrev_b32 v18, 4, v0\ns_lshl_b32 s11, s94, 10\nv_add_u32 v18, s11, v18")
    e("v_sub_u32 v19, 2047, v18\nv_cvt_f32_i32 v19, v19")
    e(f"v_mov_b32 v23, {CODE_ZERO}")
    KX, KE, KO = 80, 48, 60
    for k in range(9):
        e(f"v_subrev_f32 v20, {fbits(2*k)}, v19")
        e(f"v_subrev_f32 v21, {fbits(2*k+1)}, v19")
        e("v_cvt_pk_bf16_f32 v20, v20, v21")
        e("v_and_b32 v21, 0xffff, v20")
        e("v_med3_u32 v21, v21, s12, v23")
        e(f"v_lshl_add_u32 v{24+2*(k&1)}, v21, 1, v22")
        P.ds(f"ds_read_u16 v{KX+2*k}, v{24+2*(k&1)}", "kg")
        if k < 8:
            e("v_lshrrev_b32 v20, 16, v20")
            e("v_med3_u32 v20, v20, s12, v23")
            e(f"v_lshl_add_u32 v{25+2*(k&1)}, v20, 1, v22")
            P.ds(f"ds_read_u16 v{KX+2*k+1}, v{25+2*(k&1)}", "kg")
    e(f"s_mul_i32 s11, s69, 8320\ns_add_u32 s11, s11, {L_S1}")
    e("v_lshlrev_b32 v18, 1, v18\nv_add_u32 v18, s11, v18")
    e("v_and_b32 v20, 7, v0\nv_lshlrev_b32 v20, 2, v20\nv_add_u32 v20, s11, v20\nv_mov_b32 v21, 0")
    P.wait_lg0()
    for k in range(8):
        e(f"v_lshl_or_b32 v{KE+k}, v{KX+2*k+1}, 16, v{KX+2*k}")
        e(f"v_lshl_or_b32 v{KO+k}, v{KX+2*k+2}, 16, v{KX+2*k+1}")
    P.ds(f"ds_write_b128 v18, v[{KE}:{KE+3}]", "kr")
    P.ds(f"ds_write_b128 v18, v[{KE+4}:{KE+7}] offset:16", "kr")
    P.ds(f"ds_write_b128 v18, v[{KO}:{KO+3}] offset:4160", "kr")
    P.ds(f"ds_write_b128 v18, v[{KO+4}:{KO+7}] offset:4176", "kr")
    P.ds("ds_write_b32 v20, v21 offset:4096", "kr")
    P.ds(f"ds_write_b32 v20, v21 offset:{4160+4096}", "kr")
    r1, r2, r3 = P.label("r"), P.label("r"), P.label("r")
    e("s_waitcnt vmcnt(0)")
    P.vm = []
    e(f"s_cmp_lg_u32 s68, 1\ns_cbranch_scc1 {r1}")
    e(f"v_cmp_ne_u32 vcc, s{S_TAG}, v144\ns_cmp_eq_u64 vcc, 0\ns_cbranch_scc1 {r1}")
    poll([141], 144)
    e(f"{r1}:")
    if is_g:
        e(f"s_cmp_lg_u32 s68, 0\ns_cbranch_scc1 {r2}")
        lp, ok = P.label("sg"), P.label("sgok")
        e(f"s_mov_b32 s13, {SPIN_MAX}")
        e(f"{lp}:")
        e(f"v_cmp_ne_u32 vcc, s{S_TAG}, v145\nv_cmp_ne_u32 s[14:15], s{S_TAG}, v147\ns_or_b64 vcc, vcc, s[14:15]")
        e(f"s_cmp_eq_u64 vcc, 0\ns_cbranch_scc1 {ok}")
        e(f"s_sub_u32 s13, s13, 1\ns_cbranch_scc1 {ok}")
        e("s_sleep 8")
        e(f"global_load_dwordx4 v[144:147], v140, {P_WS} sc1")
        e("s_waitcnt vmcnt(0)")
        e(f"s_branch {lp}")
        e(f"{ok}:")
        for b in (144, 146):
            e(f"v_and_b32 v148, 0xffff0000, v{b}\nv_lshlrev_b32 v{b+1}, 16, v{b}")
            e(f"v_rcp_f32 v{b}, v148")
            e(f"v_fma_f32 v149, -v148, v{b}, 2.0\nv_mul_f32 v{b}, v{b}, v149\nv_mul_f32 v{b+1}, v{b+1}, v{b}")
        e(f"v_add_u32 v17, {L_STAT}, v46")
        e("ds_write_b128 v17, v[144:147]")
        e(f"{r2}:")
        e(f"s_cmp_lg_u32 s68, 2\ns_cbranch_scc1 {r3}")
        e(f"v_lshlrev_b32 v17, 3, v0\nv_add_u32 v17, {L_STAT+1536}, v17")
        e("v_and_b32 v145, 0xffff0000, v144\nv_lshlrev_b32 v144, 16, v144")
        e("ds_write_b64 v17, v[144:145]")
        e(f"{r3}:")
    bar(6)
    if is_g:
        e("s_barrier")
    e("s_barrier")
    e("s_setprio 0")
    P.vm, P.lg = [], []
    nstamp[0] = 10
    stamp()


e("L_GA:")
aux_phase1(True)
e("L_AUX2:")
P.fence()
P.vm, P.lg = [], []
if DIAG:
    e(f"s_mul_i32 s11, s69, 8320\ns_add_u32 s11, s11, {L_S1}\ns_lshl_b32 s12, s94, 11\ns_add_u32 s11, s11, s12\nv_add_u32 v17, s11, v46")
    e("ds_read_b128 v[144:147], v17\nds_read_b128 v[148:151], v17 offset:1024")
    e(f"s_lshl_b32 s11, s95, 13\ns_add_u32 s11, s11, s12\ns_add_u32 s11, s11, {WS_DBG+0x100000}\nv_add_u32 v17, s11, v46")
    e("s_waitcnt lgkmcnt(0)")
    e(f"global_store_dwordx4 v17, v[144:147], {P_WS}\nglobal_store_dwordx4 v17, v[148:151], {P_WS} offset:1024")
SX, SB = 200, 208
e(f"s_and_b32 s11, s68, 1\ns_lshl_b32 s11, s11, 5\ns_lshl_b32 s12, s{S_RB2}, 6\ns_add_u32 s92, s11, s12")
e(f"s_lshr_b32 s11, s68, 1\ns_lshl_b32 s11, s11, 5\ns_lshl_b32 s12, s{S_CT}, 6\ns_add_u32 s93, s11, s12")
e("v_and_b32 v17, 31, v0\nv_add_u32 v17, s92, v17")
e("v_lshrrev_b32 v18, 5, v0\nv_lshlrev_b32 v18, 2, v18\nv_add_u32 v18, s93, v18")
e("v_lshlrev_b32 v19, 1, v18\nv_lshl_add_u32 v20, v17, 10, v19")
for qd in range(4):
    P.vmem(f"global_load_dwordx2 v[{SX+2*qd}:{SX+2*qd+1}], v20, {P_X} offset:{16*qd}", "sx")
    P.vmem(f"global_load_dwordx2 v[{SB+2*qd}:{SB+2*qd+1}], v19, {P_B2} offset:{16*qd}", "sx")
e("v_lshlrev_b32 v216, 1, v17\nv_lshl_add_u32 v216, v18, 12, v216")
e("s_lshl_b32 s11, s95, 1\nv_mov_b32 v17, s11")
P.vmem(f"global_load_ushort v217, v17, {P_DSK}", "sx")
e(f"s_mul_i32 s13, s68, 4608\ns_add_u32 s13, s13, {L_U}")
e("v_lshlrev_b32 v17, 3, v0\nv_add_u32 v17, s13, v17\nv_mov_b32 v18, 0\nv_mov_b32 v19, 0")
P.ds("ds_write_b64 v17, v[18:19]", "uz")
e("s_mov_b32 s63, s68")
g2_setup_offsets()
e("s_add_u32 s100, s100, 16384\ns_cmp_ge_u32 s100, 28672\ns_cselect_b32 s11, 28672, 0\ns_sub_u32 s100, s100, s11")
e("s_mul_i32 s14, s68, 24576")
for k in range(16, 28):
    if k == 22:
        e("s_waitcnt vmcnt(6)")
    for d in range(2):
        e(f"s_add_u32 m0, s14, {((k-16)*2+d)*1024}")
        e("s_add_u32 s11, s50, s100" if d == 0 else f"s_add_u32 s11, s11, {112*1024}")
        P.vmem(f"buffer_load_dwordx4 v46, {R_WS}, s11 offen sc1 lds", "w2l")
    kstep_adv(100)
e(f"v_and_b32 v20, 31, v0\nv_lshlrev_b32 v20, 2, v20\nv_add_u32 v20, {FL_XT}, v20\nv_mov_b32 v21, {M_XT}\nv_mov_b32 v23, 1")
e(f"s_lshl_b32 s11, s68, 2\ns_add_u32 s11, s11, {M_W2L}\nv_mov_b32 v24, s11")
x1, x2 = P.label("xt"), P.label("xt")
e(f"s_cmp_lg_u32 s68, 0\ns_cbranch_scc1 {x1}")
e(f"global_load_dword v22, v20, {P_WS} sc1")
e("s_waitcnt vmcnt(0)")
e("ds_write_b32 v24, v23")
x3 = P.label("xt")
e(f"v_cmp_ne_u32 vcc, s{S_TAG}, v22\ns_cmp_eq_u64 vcc, 0\ns_cbranch_scc1 {x3}")
poll([20], 22)
e(f"{x3}:")
e("ds_write_b32 v21, v23")
e(f"s_branch {x2}")
e(f"{x1}:")
e("s_waitcnt vmcnt(0)")
e("ds_write_b32 v24, v23")
lds_spin(21, 22, 2)
e(f"{x2}:")
P.vm, P.lg = [], []
stamp()
e(f"s_lshl_b32 s11, s95, 12\ns_add_u32 s11, s11, {WS_XNT}\nv_add_u32 v17, s11, v46")
for i in range(4):
    P.vmem(f"global_load_dwordx4 v[{48+4*i}:{51+4*i}], v17, {P_WS} offset:{1024*i} sc1", "u")
e("v_add_u32 v17, s13, v46")
VA, VB = 4, 8
e("v_and_b32 v18, 15, v0\nv_lshrrev_b32 v19, 4, v0")
e("v_lshlrev_b32 v20, 3, v19\nv_sub_u32 v20, v20, v18\nv_add_u32 v20, 2031, v20\nv_lshrrev_b32 v20, 1, v20\nv_lshlrev_b32 v20, 2, v20")
e("v_and_b32 v21, 1, v18\nv_xor_b32 v21, 1, v21\nv_mul_u32_u24 v21, 4160, v21\nv_add_u32 v20, v20, v21")
e(f"s_mul_i32 s11, s69, 8320\ns_add_u32 s11, s11, {L_S1 - 512 - 192}\ns_lshl_b32 s12, s94, 8\ns_sub_u32 s11, s11, s12")
e(f"v_add_u32 v{VA}, s11, v20")
for ap in range(1, 4):
    e(f"v_subrev_u32 v{VA+ap}, {1024*ap}, v{VA}")
e("v_lshlrev_b32 v20, 5, v18\nv_lshl_add_u32 v20, v19, 4, v20")
e(f"s_add_u32 s11, s13, {480-192}\ns_sub_u32 s11, s11, s12\nv_add_u32 v{VB}, s11, v20")
P.wait_vm("u")
for i in range(4):
    P.ds(f"ds_write_b128 v17, v[{48+4*i}:{51+4*i}] offset:{512 + 1024*i}", "uw")
CACC = 16
FA = [48, 112]
FB = [80, 144]


def conv_reads(bp):
    s = bp & 1
    for al in range(8):
        ap, hi = al >> 1, al & 1
        o = 128 * (1 - hi) + 16 * (3 - bp)
        r = FA[s] + 4 * al
        P.ds(f"ds_read2_b32 v[{r}:{r+1}], v{VA+ap} offset0:{o} offset1:{o+1}", f"A{bp}_{al}")
        P.ds(f"ds_read2_b32 v[{r+2}:{r+3}], v{VA+ap} offset0:{o+2} offset1:{o+3}", f"A{bp}_{al}")
        r = FB[s] + 4 * al
        P.ds(f"ds_read_b128 v[{r}:{r+3}], v{VB} offset:{512*al + 64*(3-bp)}", f"B{bp}_{al}")


P.wait_lg0()
e("v_mov_b32 v9, v46")
stamp()
conv_reads(0)
first = set()
for bp in range(4):
    s = bp & 1
    nxt = []
    if bp + 1 < 4:
        save = P.lines
        P2l = []
        P.lines = P2l
        lg_before = list(P.lg)
        conv_reads(bp + 1)
        newtags = P.lg[len(lg_before):]
        P.lg = lg_before
        P.lines = save
        nxt = list(zip(P2l, newtags))
    order = []
    for m in range(8):
        for al in range(m + 1):
            for de in range(m + 1):
                if max(al, de) == m and al + de <= 7:
                    order.append((al, de))
    waited = -1
    for idx, (al, de) in enumerate(order):
        m = max(al, de)
        if m > waited:
            P.wait_lg([f"A{bp}_{m}", f"B{bp}_{m}"])
            waited = m
        tau = al + de
        a = CACC + 4 * tau
        c = f"v[{a}:{a+3}]" if tau in first else "0"
        first.add(tau)
        e(f"v_mfma_f32_16x16x32_bf16 v[{a}:{a+3}], v[{FA[s]+4*al}:{FA[s]+4*al+3}], v[{FB[s]+4*de}:{FB[s]+4*de+3}], {c}")
        if waited == 7 or idx >= 12:
            if nxt:
                ln, tg = nxt.pop(0)
                P.lines.append(ln)
                P.lg.append(tg)
    for ln, tg in nxt:
        P.lines.append(ln)
        P.lg.append(tg)
stamp()
e(f"s_xor_b32 s11, s68, 1\ns_lshl_b32 s11, s11, 12\ns_add_u32 s11, s11, {L_EX}\nv_add_u32 v10, s11, v9")
e(f"s_lshl_b32 s11, s68, 12\ns_add_u32 s11, s11, {L_EX}\nv_add_u32 v11, s11, v9")
la, lb = P.label("cx"), P.label("cx")
e(f"s_cmp_eq_u32 s94, 0\ns_cbranch_scc1 {la}")
for j in range(4):
    e(f"ds_write_b128 v10, v[{CACC+4*j}:{CACC+4*j+3}] offset:{1024*j}")
e("s_waitcnt lgkmcnt(0)")
for j in range(16):
    e(f"v_mov_b32 v{CACC+j}, v{CACC+16+j}")
e(f"s_branch {lb}")
e(f"{la}:")
e("s_nop 7")
for j in range(4):
    e(f"ds_write_b128 v10, v[{CACC+16+4*j}:{CACC+16+4*j+3}] offset:{1024*j}")
e(f"{lb}:")
e(f"s_lshl_b32 s11, s68, 2\ns_add_u32 s11, s11, {M_PAIR}\nv_mov_b32 v12, s11\nv_mov_b32 v13, 1")
e("s_waitcnt lgkmcnt(0)")
e("ds_write_b32 v12, v13")
e("v_xor_b32 v12, 4, v12")
lds_spin(12, 13)
for j in range(4):
    P.ds(f"ds_read_b128 v[{48+4*j}:{51+4*j}], v11 offset:{1024*j}", "cxr")
e("v_and_b32 v12, 15, v0\nv_lshlrev_b32 v12, 5, v12\nv_lshrrev_b32 v13, 4, v0\nv_lshl_add_u32 v12, v13, 3, v12")
e("s_lshl_b32 s12, s94, 11\ns_add_u32 s11, s13, s12\nv_add_u32 v13, s11, v12")
for j in range(4):
    P.ds(f"ds_read_b64 v[{64+2*j}:{65+2*j}], v13 offset:{512 + 512*j}", "cxr")
e(f"s_lshl_b32 s11, s95, 12\ns_add_u32 s11, s11, s12\ns_add_u32 s11, s11, {WS_AT}\nv_add_u32 v12, s11, v12")
P.wait_vm("sx")
e("v_lshlrev_b32 v217, 16, v217")
P.wait_lg0()
for j in range(4):
    a = CACC + 4 * j
    for r in range(4):
        e(f"v_add_f32 v{a+r}, v{a+r}, v{48+4*j+r}")
    for r in range(4):
        src = 64 + 2 * j + (r >> 1)
        if r & 1:
            e(f"v_and_b32 v14, 0xffff0000, v{src}")
        else:
            e(f"v_lshlrev_b32 v14, 16, v{src}")
        e(f"v_fmac_f32 v{a+r}, v14, v217")
    e(f"v_cvt_pk_bf16_f32 v{72+2*j}, v{a}, v{a+1}\nv_cvt_pk_bf16_f32 v{73+2*j}, v{a+2}, v{a+3}")
    P.vmem(f"global_store_dwordx2 v12, v[{72+2*j}:{73+2*j}], {P_WS} offset:{512*j} sc1", "at")
e(f"s_lshl_b32 s11, s2, 2\ns_add_u32 s11, s11, {FL_Y}")
P.wait_vm("at")
combine_flag(M_CNTY, 11, 14)
stamp()
for qd in range(4):
    for hf in range(2):
        xs, bs = SX + 2 * qd + hf, SB + 2 * qd + hf
        d0 = 48 + 4 * qd + 2 * hf
        e(f"v_lshlrev_b32 v{d0}, 16, v{xs}\nv_lshlrev_b32 v14, 16, v{bs}\nv_add_f32 v{d0}, v{d0}, v14")
        e(f"v_and_b32 v{d0+1}, 0xffff0000, v{xs}\nv_and_b32 v14, 0xffff0000, v{bs}\nv_add_f32 v{d0+1}, v{d0+1}, v14")
for i in range(16):
    e(f"v_mov_b32 v{64+i}, 0")
e(f"s_lshl_b32 s11, s{S_CT}, 7\ns_add_u32 s11, s11, {FL_Y}")
e(f"v_and_b32 v20, 31, v0\nv_lshlrev_b32 v20, 2, v20\nv_add_u32 v20, s11, v20\nv_mov_b32 v21, {M_Y}\nv_mov_b32 v23, 1")
y1, y2 = P.label("y"), P.label("y")
e(f"s_cmp_lg_u32 s68, 0\ns_cbranch_scc1 {y1}")
poll([20], 22, sleep=8)
e("ds_write_b32 v21, v23")
e(f"s_branch {y2}")
e(f"{y1}:")
lds_spin(21, 22, 2)
e(f"{y2}:")
P.vm, P.lg = [], []
stamp()
for qd in range(4):
    for r in range(4):
        e(f"s_mov_b32 s11, {WS_AT + (8*qd + r)*4096}")
        P.vmem(f"buffer_load_short_d16_hi v{64+4*qd+r}, v216, {R_WS}, s11 offen sc1", "ay")
P.wait_vm0()
for i in range(16):
    e(f"v_add_f32 v{48+i}, v{48+i}, v{64+i}")
for j in range(4):
    e(f"ds_write_b128 v11, v[{48+4*j}:{51+4*j}] offset:{1024*j}")
e("s_waitcnt lgkmcnt(0)")
stamp()
e("s_barrier")
stamp_dump()
e("s_endpgm")

e("L_X:")
e(f"s_lshl_b32 s{S_RB}, s{S_XCD}, 2\ns_add_u32 s{S_RB}, s{S_RB}, s{S_SLOT}\ns_sub_u32 s{S_RB}, s{S_RB}, 28")
e(f"s_mov_b32 s{S_FB}, 0")
e(f"s_cmp_lt_u32 s{S_WAVE}, 4")
e("s_cbranch_scc1 L_XC")
aux_phase1(False)
e("s_branch L_AUX2")

e("L_XC:")
P.vm, P.lg = [], []
stamp_reset()
e("s_setprio 3")
XD, DD, WC = 16, 80, 208
e(f"s_lshl_b32 s11, s{S_RB}, 16\ns_lshl_b32 s12, s{S_WAVE}, 14\ns_add_u32 s11, s11, s12")
e("v_lshrrev_b32 v4, 3, v0\nv_and_b32 v5, 7, v0\nv_lshlrev_b32 v6, 4, v5\nv_lshl_add_u32 v7, v4, 10, v6\nv_add_u32 v7, s11, v7\nv_add_u32 v8, 8192, v7")
e("v_mov_b32 v15, 0")
e("v_mov_b32 v10, 0x3f803f80")
e("s_waitcnt lgkmcnt(0)")
if DIAG:
    e("s_mov_b32 s72, s70")
    nstamp[0] = 1
for gam in range(2):
    for i in range(8):
        r = XD + 32 * gam + 4 * i
        P.vmem(f"global_load_dwordx4 v[{r}:{r+3}], v{7+gam}, {P_X} offset:{128*i}", f"x{gam}")
srd(R_WS, 48, 0x10000000)
e("s_barrier")


def red8(reg):
    e(f"v_add_f32_dpp v{reg}, v{reg}, v{reg} quad_perm:[1,0,3,2] row_mask:0xf bank_mask:0xf")
    e(f"v_add_f32_dpp v{reg}, v{reg}, v{reg} quad_perm:[2,3,0,1] row_mask:0xf bank_mask:0xf")
    e(f"v_add_f32_dpp v{reg}, v{reg}, v{reg} row_half_mirror row_mask:0xf bank_mask:0xf")


def ln_stats(gam):
    xd = XD + 32 * gam
    dd = DD + 64 * gam
    a0, a1 = 11, 12
    P.wait_vm(f"x{gam}")
    for j in range(32):
        a = a0 + (j & 1)
        c = "0" if j < 2 else f"v{a}"
        e(f"v_dot2_f32_bf16 v{a}, v{xd+j}, v10, {c}")
    e(f"v_add_f32 v{a0}, v{a0}, v{a1}")
    red8(a0)
    m = 240 + 4 * gam
    e(f"v_mul_f32 v{m}, {fbits(1/512)}, v{a0}")
    e(f"v_cvt_pk_bf16_f32 v{m+2}, v{m}, v{m}")
    e(f"v_lshlrev_b32 v{m+2}, 16, v{m+2}")
    e(f"v_sub_f32 v{m+1}, v{m}, v{m+2}")
    e(f"v_sub_f32 v{m+2}, 0, v{m+2}\nv_mov_b32 v{m+3}, v{m+2}")
    for j in range(32):
        d = dd + 2 * j
        e(f"v_lshlrev_b32 v{d}, 16, v{xd+j}")
        e(f"v_and_b32 v{d+1}, 0xffff0000, v{xd+j}")
        e(f"v_pk_add_f32 v[{d}:{d+1}], v[{d}:{d+1}], v[{m+2}:{m+3}]")
        if j == 0:
            e(f"v_pk_mul_f32 v[12:13], v[{d}:{d+1}], v[{d}:{d+1}]")
        else:
            e(f"v_pk_fma_f32 v[12:13], v[{d}:{d+1}], v[{d}:{d+1}], v[12:13]")
    e("v_add_f32 v12, v12, v13")
    red8(12)
    e(f"v_mul_f32 v12, {fbits(1/512)}, v12")
    e(f"v_fma_f32 v12, -v{m+1}, v{m+1}, v12")
    e("v_max_f32 v12, 0, v12")
    e("v_cvt_pk_bf16_f32 v12, v12, v12\nv_lshlrev_b32 v12, 16, v12")
    e(f"v_add_f32 v12, {fbits(1e-5)}, v12")
    e("v_cvt_pk_bf16_f32 v12, v12, v12\nv_lshlrev_b32 v12, 16, v12")
    e("v_sqrt_f32 v12, v12")
    e("v_cvt_pk_bf16_f32 v12, v12, v12\nv_lshlrev_b32 v12, 16, v12")
    s = 248 + 2 * gam
    e(f"v_rcp_f32 v{s}, v12")
    e(f"v_fma_f32 v13, -v12, v{s}, 2.0")
    e(f"v_mul_f32 v{s}, v{s}, v13")
    e(f"v_mov_b32 v{s+1}, v{s}")


L_T2 = 81920
e(f"s_lshl_b32 s11, s{S_WAVE}, 4\nv_add_u32 v9, s11, v4")
e(f"v_mul_u32_u24 v9, 1056, v9\ns_lshl_b32 s11, s{S_WAVE}, 8\nv_add3_u32 v9, v9, s11, v6")
for gam in range(2):
    ln_stats(gam)
    s = 248 + 2 * gam
    for i in range(8):
        for j in range(4):
            d = DD + 64 * gam + 8 * i + 2 * j
            e(f"v_pk_mul_f32 v[{d}:{d+1}], v[{d}:{d+1}], v[{s}:{s+1}]")
        r = XD + 32 * gam + 4 * i
        for j in range(4):
            d = DD + 64 * gam + 8 * i + 2 * j
            e(f"v_cvt_pk_bf16_f32 v{r+j}, v{d}, v{d+1}")
        P.ds(f"ds_write_b128 v9, v[{r}:{r+3}] offset:{gam*(8*1056+128) + 128*i}", "xw")
    stamp()
P.wait_lg0()
e("s_barrier")
stamp()
e(f"v_mov_b32 v14, {M_TAG}")
P.ds("ds_read_b32 v14, v14", "tag")
e("v_lshrrev_b32 v4, 4, v0\nv_bfe_u32 v5, v0, 2, 2\nv_lshl_add_u32 v5, v4, 3, v5\nv_mul_u32_u24 v5, 1056, v5\nv_lshl_add_u32 v5, v4, 7, v5")
e(f"v_and_b32 v6, 3, v0\nv_lshl_add_u32 v5, v6, 3, v5\ns_lshl_b32 s11, s{S_WAVE}, 8\nv_add_u32 v5, s11, v5")
for db in range(8):
    for lb in range(2):
        r = DD + 8 * db + 4 * lb
        for h in range(2):
            P.ds(f"ds_read_b64_tr_b16 v[{r+2*h}:{r+2*h+1}], v5 offset:{lb*(32*1056+512) + h*4224 + db*32}", f"t{db}")
e(f"s_mul_i32 s11, s{S_WAVE}, 9216\ns_add_u32 s11, s11, {L_T2}")
e("v_and_b32 v6, 15, v0\nv_mul_u32_u24 v6, 144, v6\nv_lshl_add_u32 v6, v4, 4, v6\nv_add_u32 v6, s11, v6")
e("v_lshrrev_b32 v7, 3, v0\nv_and_b32 v8, 7, v0\nv_lshlrev_b32 v8, 4, v8\nv_mul_u32_u24 v9, 144, v7\nv_add3_u32 v9, v9, v8, s11")
e("v_lshl_add_u32 v7, v7, 12, v8")
e(f"s_lshl_b32 s11, s{S_WAVE}, 19\ns_lshl_b32 s12, s{S_RB}, 7\ns_add_u32 s93, s11, s12\ns_add_u32 s93, s93, {WS_XNT}")
for hf in range(2):
    for db in range(4 * hf, 4 * hf + 4):
        P.wait_lg(f"t{db}")
        for lb in range(2):
            r = DD + 8 * db + 4 * lb
            P.ds(f"ds_write_b128 v6, v[{r}:{r+3}] offset:{(db & 3)*16*144 + lb*64}", "t2w")
    for i in range(8):
        r = XD + 32 * hf + 4 * i
        P.ds(f"ds_read_b128 v[{r}:{r+3}], v9 offset:{i*8*144}", f"t2r{hf}_{i}")
    for i in range(8):
        r = XD + 32 * hf + 4 * i
        P.wait_lg(f"t2r{hf}_{i}")
        e(f"s_add_u32 s11, s93, {(hf*64 + i*8)*4096}")
        P.vmem(f"buffer_store_dwordx4 v[{r}:{r+3}], v7, {R_WS}, s11 offen sc1", "xt")
e(f"v_readfirstlane_b32 s{S_TAG}, v14")
P.wait_vm0()
e(f"s_lshl_b32 s11, s{S_RB}, 2\ns_add_u32 s11, s11, {FL_XT}")
combine_flag(M_CNTX, 11, 12)
stamp()
e("s_setprio 0")
e("s_barrier\ns_barrier\ns_barrier")
e(f"v_lshlrev_b32 v{V_LANE16}, 4, v0")
e(f"s_mov_b32 s63, s{S_WAVE}")
g2_setup_offsets()
for k in range(N_EARLY_W2):
    for d in range(2):
        w2_load(k, d)
e("s_barrier")
e("s_branch L_G2JOIN")
e("L_END:")
e("s_endpgm")

body = pad_hazards(P.lines)
hdr = f"""; Fused LayerNorm + S4 conv + GELU MLP, one persistent launch (generated by work/gen.py)
; @launch grid=(256,1,1) block=(512,1,1) lds={LDS_BYTES}
.amdgcn_target "amdgcn-amd-amdhsa--gfx950"
.text
.globl {KNAME}
.p2align 8
.type {KNAME},@function
"""
tail = f"""
.section .rodata,"a"
.p2align 6
.amdhsa_kernel {KNAME}
  .amdhsa_next_free_vgpr 256
  .amdhsa_next_free_sgpr 102
  .amdhsa_accum_offset 256
  .amdhsa_group_segment_fixed_size 0
  .amdhsa_kernarg_size 136
  .amdhsa_user_sgpr_count 2
  .amdhsa_user_sgpr_kernarg_segment_ptr 1
  .amdhsa_system_sgpr_workgroup_id_x 1
.end_amdhsa_kernel
"""
open(OUT, "w").write(hdr + "\n".join(body) + tail)
print("wrote", OUT, len(body), "lines")
```
